```python
import torch

def _softmax(x, axis=-1):
    return torch.softmax(x, dim=axis)
def _gelu(x):
    return torch.nn.functional.gelu(x, approximate="tanh")
def _silu(x):
    return torch.nn.functional.silu(x)
def _sigmoid(x):
    return torch.sigmoid(x)
def _layernorm(x, axis=-1, eps=1e-5):
    m = x.mean(dim=axis, keepdim=True)
    v = x.var(dim=axis, keepdim=True, unbiased=False)
    return (x - m) / torch.sqrt(v + eps)
def _scatter_add(tgt, idx, src, axis=0):
    return tgt.clone().index_add_(axis, idx, src)
def _segment_sum(src, seg, n):
    out = torch.zeros((n,) + src.shape[1:], dtype=src.dtype)
    return out.index_add_(0, seg, src)
def _pad(x, pw):
    flat = tuple(v for pair in reversed(pw) for v in pair)
    return torch.nn.functional.pad(x, flat)

kernel_name = 'recurrent_scan__sliding_block_cached__moe_arch_mod__prompt'

def setup_inputs():

    _w = (lambda a: (lambda t: t.to(torch.bfloat16) if t.is_floating_point() else t)(torch.as_tensor(a)))
    def _A_setup():
        B, Sq, D = 1, 2048, 512
        Hq, Hkv, Sk, Dh = 32, 32, 2048, 128
        assert Hq % Hkv == 0, (Hq, Hkv)
        return {
            "x": _w((lambda *s: torch.randn(*s, dtype=torch.bfloat16) * 0.05)(B, Sq, D)),
            "k_cache": _w((lambda *s: torch.randn(*s, dtype=torch.bfloat16) * 0.8)(B, Hkv, Sk, Dh)),
            "v_cache": _w((lambda *s: torch.randn(*s, dtype=torch.bfloat16) * 0.2)(B, Hkv, Sk, Dh)),
            "wq": _w((lambda *s: torch.randn(*s, dtype=torch.bfloat16) * 0.8)(D, Hq * Dh) * (D ** -0.5)),
            "wo": _w((lambda *s: torch.randn(*s, dtype=torch.bfloat16) * 0.2)(Hq * Dh, D) * ((Hq * Dh) ** -0.5)),
        }
    _A_in = _A_setup()

    def _B_setup():
        B, S, D, F, C = 1, 2048, 512, 1376, 2
        return {
            "x": _w((lambda *s: torch.randn(*s, dtype=torch.bfloat16) * 0.05)(B, S, D)),
            "w_r": _w((lambda *s: torch.randn(*s, dtype=torch.bfloat16) * 0.2)(D)),
            "w_gate": _w((lambda *s: torch.randn(*s, dtype=torch.bfloat16) * 0.1)(D, F)),
            "w_up": _w((lambda *s: torch.randn(*s, dtype=torch.bfloat16) * 0.1)(D, F)),
            "w_down": _w((lambda *s: torch.randn(*s, dtype=torch.bfloat16) * 0.1)(F, D)),
        }
    _B_in = _B_setup()

    return {
        "A_x": _A_in["x"],
        "A_k_cache": _A_in["k_cache"],
        "A_v_cache": _A_in["v_cache"],
        "A_wq": _A_in["wq"],
        "A_wo": _A_in["wo"],
        "B_x": _B_in["x"],
        "B_w_r": _B_in["w_r"],
        "B_w_gate": _B_in["w_gate"],
        "B_w_up": _B_in["w_up"],
        "B_w_down": _B_in["w_down"],
    }

def reference(A_x, A_k_cache, A_v_cache, A_wq, A_wo, B_x, B_w_r, B_w_gate, B_w_up, B_w_down):
    def _A_ref(x, k_cache, v_cache, wq, wo):
        B, Sq, D = x.shape
        Hq, Dh = 32, 128
        Hkv, Sk = k_cache.shape[1], k_cache.shape[2]
        W = min(4096, max(256, Sk // 4))
        rep = Hq // Hkv
        q = (lambda x, *d: x.permute(*d))((x @ wq).reshape(B, Sq, Hq, Dh), 0, 2, 1, 3)
        k = (lambda x, n, axis: torch.repeat_interleave(x, n, dim=axis))(k_cache[:, :, Sk - W:, :], rep, axis=1)
        v = (lambda x, n, axis: torch.repeat_interleave(x, n, dim=axis))(v_cache[:, :, Sk - W:, :], rep, axis=1)
        scores = torch.einsum("bhqd,bhkd->bhqk", q, k) * (Dh ** -0.5)
        p = _softmax(scores, axis=-1)
        o = torch.einsum("bhqk,bhkd->bhqd", p, v)
        return (lambda x, *d: x.permute(*d))(o, 0, 2, 1, 3).reshape(B, Sq, Hq * Dh) @ wo

    def _B_ref(x, w_r, w_gate, w_up, w_down):
        B, S, D = x.shape
        C = 2
        r = x @ w_r
        idx = torch.argsort(-r, axis=-1)[:, :C]
        idx_e = (lambda x, n, axis: torch.repeat_interleave(x, n, dim=axis))(idx.reshape(B, C, 1), D, axis=2)
        x_sel = (lambda x, i, axis: torch.take_along_dim(x, i, dim=axis))(x, idx_e, axis=1)
        g = _silu(x_sel @ w_gate)
        u = x_sel @ w_up
        y = (g * u) @ w_down
        r_sel = _sigmoid((lambda x, i, axis: torch.take_along_dim(x, i, dim=axis))(r, idx, axis=1))
        y = y * r_sel.reshape(B, C, 1)
        b_off = (torch.arange(B) * S).reshape(B, 1)
        flat_idx = (idx + b_off).reshape(B * C)
        zero = (x * 0.0).reshape(B * S, D)
        upd = _scatter_add(zero, flat_idx, y.reshape(B * C, D), axis=0)
        return x + upd.reshape(B, S, D)

    x = A_x
    xn = _layernorm(x, axis=-1)
    s = _A_ref(xn, A_k_cache, A_v_cache, A_wq, A_wo)
    g = _silu(_B_ref(xn, B_w_r, B_w_gate, B_w_up, B_w_down))
    return x + s * g
```

```python
import re

_R = re.compile(r"^(-|abs\()?([vas])(?:(\d+)|\[(\d+):(\d+)\])\)?$")
def regs(tok):
    tok = tok.strip()
    if tok.startswith("-"): tok = tok[1:]
    if tok.startswith("abs(") and tok.endswith(")"): tok = tok[4:-1]
    if tok.startswith("|") and tok.endswith("|"): tok = tok[1:-1]
    if tok == "vcc": return {("s", 106), ("s", 107)}
    if tok == "vcc_lo": return {("s", 106)}
    if tok == "vcc_hi": return {("s", 107)}
    if tok == "exec": return {("s", 126), ("s", 127)}
    if tok == "exec_lo": return {("s", 126)}
    if tok == "exec_hi": return {("s", 127)}
    if tok == "m0": return {("s", 124)}
    m = re.match(r"^([vas])(?:(\d+)|\[(\d+):(\d+)\])$", tok)
    if not m: return set()
    f = m.group(1)
    if m.group(2) is not None: return {(f, int(m.group(2)))}
    return {(f, i) for i in range(int(m.group(3)), int(m.group(4)) + 1)}

TRANS = ("v_exp_f32", "v_log_f32", "v_rcp_f32", "v_rsq_f32", "v_sqrt_f32", "v_sin_f32", "v_cos_f32", "v_rcp_iflag_f32")

class Ins:
    def __init__(self, text):
        self.text = text
        t = text.split(";")[0].strip()
        self.label = t.endswith(":")
        self.directive = t.startswith(".")
        self.empty = (t == "")
        self.mn = ""; self.ops = []
        self.w = set(); self.r = set()
        self.cls = "none"
        if self.label or self.directive or self.empty: return
        parts = t.split(None, 1)
        self.mn = mn = parts[0]
        rest = parts[1] if len(parts) > 1 else ""
        ops = []; cur = ""; d = 0
        for ch in rest:
            if ch == "[": d += 1
            if ch == "]": d -= 1
            if ch == "," and d == 0: ops.append(cur.strip()); cur = ""
            else: cur += ch
        if cur.strip(): ops.append(cur.strip())
        mods = []
        if ops:
            sp = ops[-1].split()
            ops[-1] = sp[0]; mods = sp[1:]
        self.ops = ops; self.mods = mods
        R = lambda i: regs(ops[i]) if i < len(ops) else set()
        allr = lambda lo: set().union(*[R(i) for i in range(lo, len(ops))]) if len(ops) > lo else set()
        self.dpp = any(m.startswith(("quad_perm", "row_", "wave_")) for m in mods) or mn.endswith("_dpp")
        if mn.startswith("v_mfma"):
            self.cls = "mfma"; self.w = R(0); self.a = R(1); self.b = R(2); self.c = R(3); self.r = self.a | self.b | self.c
            self.passes = 8 if "32x32x16" in mn else 4
        elif mn.startswith("v_cmp"):
            self.cls = "valu"; self.w = R(0); self.r = allr(1)
            if mn.startswith("v_cmpx"): self.w |= regs("exec")
        elif mn.startswith("v_permlane"):
            self.cls = "valu"; self.w = R(0) | R(1); self.r = R(0) | R(1)
        elif mn.startswith("v_"):
            self.cls = "valu"; self.w = R(0); self.r = allr(1)
            if mn.startswith(("v_fmac", "v_pk_fmac", "v_dot2c")) or self.dpp: self.r |= R(0)
            if mn.startswith(("v_add_co", "v_sub_co", "v_addc_co", "v_subb_co", "v_div_scale")): self.w |= R(1)
            if mn.startswith("v_cndmask") and len(ops) == 3: self.r |= regs("vcc")
            if mn.startswith("v_div_fmas"): self.r |= regs("vcc")
        elif mn.startswith("ds_"):
            self.cls = "ds"
            if mn.startswith(("ds_read", "ds_bpermute", "ds_permute", "ds_swizzle")) or "_rtn" in mn: self.w = R(0); self.r = allr(1)
            else: self.r = allr(0)
        elif mn.startswith("buffer_"):
            self.cls = "vmem"
            if "lds" in mods: self.r = allr(0) | regs("m0"); self.ldsdma = True
            elif mn.startswith("buffer_load"): self.w = R(0); self.r = allr(1)
            else:
                self.r = allr(0); self.data = R(0)
                if "atomic" in mn and "sc0" in mods: self.w = R(0)
        elif mn.startswith("global_"):
            self.cls = "vmem"
            if mn.startswith("global_load"): self.w = R(0); self.r = allr(1)
            elif "atomic" in mn and "sc0" in mods: self.w = R(0); self.r = allr(1)
            else: self.r = allr(0); self.data = R(1)
        elif mn.startswith("s_"):
            self.cls = "salu"
            if mn.startswith(("s_cmp", "s_waitcnt", "s_barrier", "s_nop", "s_branch", "s_cbranch", "s_endpgm", "s_setprio", "s_sleep", "s_bitcmp", "s_setpc")):
                self.r = allr(0)
            else:
                self.w = R(0); self.r = allr(1)
                if "saveexec" in mn: self.w |= regs("exec")
        else:
            raise ValueError("unknown instruction: " + text)
    def states(self):
        if self.cls == "none": return 0
        if self.mn == "s_nop": return int(self.ops[0], 0) + 1
        return 1

def need(p, c):
    n = 0
    isv = lambda s: {x for x in s if x[0] in "va"}
    iss = lambda s: {x for x in s if x[0] == "s"}
    if p.cls == "valu":
        wv = isv(p.w); ws = iss(p.w)
        if c.cls == "mfma" and wv & c.r: n = max(n, 2)
        if c.cls == "valu":
            if c.mn.startswith("v_permlane") and wv & c.r: n = max(n, 2)
            if c.dpp and wv & c.r: n = max(n, 2)
            if c.mn.startswith(("v_readlane", "v_readfirstlane")) and wv & c.r: n = max(n, 1)
            if p.mn.startswith(TRANS) and not c.mn.startswith(TRANS) and wv & c.r: n = max(n, 1)
            if ws & c.r:
                n = max(n, 2)
                if c.mn.startswith(("v_readlane", "v_writelane", "v_div_fmas")): n = max(n, 4)
            if regs("exec") & ws:
                if c.dpp: n = max(n, 5)
                if c.mn.startswith(("v_readlane", "v_readfirstlane", "v_writelane", "v_permlane")): n = max(n, 4)
        if c.cls == "mfma" and regs("exec") & ws: n = max(n, 4)
        if c.cls == "vmem" and ws & c.r: n = max(n, 5)
        if c.cls == "salu" and ws & c.r: n = max(n, 1)
    if p.cls == "salu":
        if regs("m0") & p.w and c.cls == "vmem" and getattr(c, "ldsdma", False): n = max(n, 1)
    if p.cls == "mfma":
        t = {4: (0, 6, 8, 8, 3), 8: (0, 10, 12, 12, 7)}[p.passes]
        if c.cls == "mfma":
            if p.w & c.c:
                if not (p.w == c.c and p.passes == c.passes): n = max(n, t[1])
            if p.w & (c.a | c.b): n = max(n, t[2])
            if p.w & c.w and not (p.w & c.c): n = max(n, t[1])
        elif c.cls in ("valu", "ds", "vmem"):
            if p.w & (c.r | c.w): n = max(n, t[3])
            if c.cls == "valu" and p.c & c.w: n = max(n, t[4])
    if p.cls == "vmem" and hasattr(p, "data") and len(p.data) >= 3:
        if c.cls == "valu" and p.data & c.w: n = max(n, 2)
        elif p.data & c.w: n = max(n, 1)
    return n

def fix_hazards(lines, insert=True, tag=""):
    out = []; hist = []
    pos = 0; added = 0
    for ln in lines:
        c = Ins(ln)
        if c.cls != "none":
            req = 0; why = None
            for p, ppos in hist[-24:]:
                d = pos - ppos - 1 + 0
                k = need(p, c)
                if k > d and k - d > req: req = k - d; why = p.text.strip()
            if req > 0:
                if insert:
                    out.append(f"    s_nop {req-1}    ; hz")
                    pos += req; added += req
                else:
                    print(f"HAZARD[{tag}] need {req} more before: {ln.strip()}   (after {why})")
                    added += req
            hist.append((c, pos + c.states() - 1))
            pos += c.states()
        out.append(ln)
    return out, added

COST = {"exp": 8}
VCOST = [8]
def cost_of(item):
    if isinstance(item, (list, tuple)): return sum(cost_of(x) for x in item)
    mn = item.split()[0]
    if mn.startswith(TRANS): return 8
    if mn.startswith(("buffer_", "global_")): return VCOST[0]
    return 4

def weave(mfmas, fixed=(), flow=(), flow_lo=0, flow_hi=None, pre=None):
    n = len(mfmas)
    gaps = [[] for _ in range(n)]; load = [0] * n
    for items, lo, hi in fixed:
        m = len(items)
        for i, it in enumerate(items):
            g = lo + int((i + 0.5) * (hi - lo) / m) if m else lo
            g = min(g, n - 1)
            gaps[g].append(it); load[g] += cost_of(it)
    if pre:
        for g, ls in pre.items():
            if g > 0: load[g - 1] += cost_of(ls)
    hi = flow_hi if flow_hi is not None else n
    tot = sum(cost_of(x) for x in flow) + sum(load[flow_lo:hi])
    per = tot / max(1, hi - flow_lo)
    g = flow_lo; cum = load[g] if g < n else 0
    for it in flow:
        c = cost_of(it)
        while g < hi - 1 and cum + c / 2 > per * (g - flow_lo + 1):
            g += 1; cum += load[g]
        gaps[g].append(it); load[g] += c; cum += c
    out = []
    for g in range(n):
        if pre and g in pre: out += list(pre[g])
        out.append(mfmas[g])
        for it in gaps[g]:
            if isinstance(it, (list, tuple)): out += list(it)
            else: out.append(it)
    return out
```

```python
from asmlib import *

XW = 8320; WQOFF = 4 * XW; STG = 50432
KSZ = 16640; VT = 8448; PS = 33536
MISC = 151296
LDS_K2 = MISC + 1024
WS_O = 0; WS_ST = 0x1000000; WS_R = 0x1008000; WS_Y = 0x1010000
WS_SIZE = 0x1100000
PN = {0: 0, 1: 2, 2: 1, 3: 3, 4: 6, 5: 4, 6: 7, 7: 5}
CSC = 0.08838834764831845 * 1.4426950408889634

import struct
def f32(x): return "0x%08x" % struct.unpack("<I", struct.pack("<f", x))[0]

V_OX, V_OWQ, V_OK, V_OV = "v1", "v2", "v3", "v4"
V_XC, V_WC, V_KC, V_VC = "v5", "v6", "v7", "v8"
V_A0, V_A1, V_A2 = "v9", "v10", "v11"
L = lambda q: 12 + q
NEGM = lambda q: 16 + 4 * q
P = lambda b, q: 32 + 16 * b + 4 * q
S = lambda b, kb, q: 64 + 32 * b + 16 * kb + 4 * q
O = lambda db, q: 128 + 16 * db + 4 * q
QF = lambda q, s: 16 * q + 4 * s
KF = lambda kb, s: 64 + 16 * kb + 4 * s
VF = lambda db: 96 + 4 * db
QA = lambda st, db: 64 + 56 * st + 4 * db
QB = lambda st, q: 64 + 56 * st + 32 + 4 * q
QC = lambda st, j: 64 + 56 * st + 48 + 4 * j
ONES = 176; CSA = lambda j: 180 + 4 * j
v4r = lambda r: f"v[{r}:{r+3}]"
a4r = lambda r: f"a[{r}:{r+3}]"

S_W, S_H, S_QB = "s3", "s26", "s27"
SRD_X, SRD_WQ, SRD_K, SRD_V, SRD_WS = "s[4:7]", "s[8:11]", "s[12:15]", "s[16:19]", "s[20:23]"
S_DBG = "s[24:25]"
S_XG, S_WG, S_XL, S_WL = "s28", "s29", "s30", "s31"
S_KC, S_FILL, S_RD, S_I = "s32", "s33", "s34", "s35"
S_T0, S_T1, S_T2, S_T3 = "s36", "s37", "s38", "s39"
S_XW, S_WW = "s48", "s49"
S_XGW, S_WGW = "s50", "s51"
S_KW, S_VW = "s52", "s53"
S_PAIR, S_PREV, S_FK, S_FV = "s54", "s55", "s56", "s57"
S_PF = "s58"
S_EX0, S_EX1 = "s60", "s61"

def mf(d, a, b, c, dk="v", ak="a", bk="a"):
    cs = c if isinstance(c, str) else f"{dk}[{c}:{c+3}]"
    return f"    v_mfma_f32_16x16x32_bf16 {dk}[{d}:{d+3}], {ak}[{a}:{a+3}], {bk}[{b}:{b+3}], {cs}"

def stage_setup():
    return [f"    s_lshl_b32 {S_T0}, {S_KC}, 7", f"    s_add_u32 {S_XG}, {S_XGW}, {S_T0}",
            f"    s_lshl_b32 {S_T0}, {S_KC}, 19", f"    s_add_u32 {S_WG}, {S_WGW}, {S_T0}",
            f"    s_add_u32 {S_XL}, {S_FILL}, {S_XW}", f"    s_add_u32 {S_WL}, {S_FILL}, {S_WW}",
            f"    s_add_u32 {S_KC}, {S_KC}, 1", f"    s_and_b32 {S_KC}, {S_KC}, 7",
            f"    s_add_u32 {S_FILL}, {S_FILL}, {STG}", f"    s_cmp_ge_u32 {S_FILL}, {3*STG}",
            f"    s_cselect_b32 {S_FILL}, 0, {S_FILL}"]

def stage_dma():
    it = []
    for e in range(4):
        it.append([f"    s_add_u32 m0, {S_WL}, {e*1056}", f"    s_add_u32 {S_T1}, {S_WG}, {e*8192}",
                   f"    buffer_load_dwordx4 {V_OWQ}, {SRD_WQ}, {S_T1} offen lds"])
    for n in range(8):
        it.append([f"    s_add_u32 m0, {S_XL}, {n*1040}", f"    s_add_u32 {S_T1}, {S_XG}, {PN[n]*2048}",
                   f"    buffer_load_dwordx4 {V_OX}, {SRD_X}, {S_T1} offen lds"])
    return it

def q_reads(st, ks):
    r = []
    for j in range(2):
        for p in range(2):
            r.append(f"    ds_read_b64_tr_b16 a[{QC(st,j)+2*p}:{QC(st,j)+2*p+1}], {V_A2} offset:{ks*8448 + p*256 + j*32}")
    for q in range(4):
        r.append(f"    ds_read_b128 {a4r(QB(st,q))}, {V_A0} offset:{q*256 + ks*64}")
    for db in range(8):
        for p in range(2):
            r.append(f"    ds_read_b64_tr_b16 a[{QA(st,db)+2*p}:{QA(st,db)+2*p+1}], {V_A1} offset:{ks*8448 + p*256 + db*32}")
    return r

def q_mfmas(st, first=False):
    m = []
    for j in range(2):
        m.append(mf(CSA(j), QC(st, j), ONES, "0" if first else CSA(j), dk="a"))
    for db in range(8):
        for q in range(4):
            m.append(mf(O(db, q), QA(st, db), QB(st, q), "0" if first else O(db, q)))
    return m

def q_addr():
    return [f"    v_add_u32 {V_A0}, {S_RD}, {V_XC}", f"    v_add_u32 {V_A1}, {S_RD}, {V_WC}",
            f"    v_lshl_add_u32 {V_A2}, {S_W}, 6, {V_A1}",
            f"    s_add_u32 {S_RD}, {S_RD}, {STG}", f"    s_cmp_ge_u32 {S_RD}, {3*STG}", f"    s_cselect_b32 {S_RD}, 0, {S_RD}"]

def kv_setup(last_valid_cmp=None):
    return [f"    s_add_u32 {S_PREV}, {S_PAIR}, 8192",
            f"    s_add_u32 {S_PAIR}, {S_PAIR}, 16384", f"    s_and_b32 {S_PAIR}, {S_PAIR}, 0x1ffff",
            f"    s_add_u32 {S_FK}, {S_FILL}, {S_KW}", f"    s_add_u32 {S_FV}, {S_FILL}, {S_VW}",
            f"    s_add_u32 {S_FILL}, {S_FILL}, {PS}", f"    s_cmp_ge_u32 {S_FILL}, {4*PS}",
            f"    s_cselect_b32 {S_FILL}, 0, {S_FILL}"]

def kv_dma(skip_v0=False):
    it = []
    for e in range(4):
        it.append([f"    s_add_u32 m0, {S_FK}, {e*(2080-256)}", "    s_nop 0",
                   f"    buffer_load_dwordx4 {V_OK}, {SRD_K}, {S_PAIR} offen offset:{e*256} lds"])
    for tt in range(2):
        if tt == 0 and skip_v0: continue
        for e in range(2):
            it.append([f"    s_add_u32 m0, {S_FV}, {tt*VT + e*(1056-256)}", "    s_nop 0",
                       f"    buffer_load_dwordx4 {V_OV}, {SRD_V}, {S_PREV if tt == 0 else S_PAIR} offen offset:{e*256} lds"])
    return it

def k_reads(half):
    return [f"    ds_read_b128 {a4r(KF(kb,s))}, {V_A0} offset:{(2*half+kb)*256 + s*64}" for kb in range(2) for s in range(4)]
def v_reads(tt):
    return [f"    ds_read_b64_tr_b16 a[{VF(db)+2*p}:{VF(db)+2*p+1}], {V_A1} offset:{tt*VT + p*512 + db*32}" for db in range(8) for p in range(2)]
def qk(b, czero=False):
    m = []
    for q in range(4):
        for kb in range(2):
            for s in range(4):
                c = S(b, kb, q) if s else ("0" if czero else NEGM(q))
                m.append(mf(S(b, kb, q), KF(kb, s), QF(q, s), c))
    return m
def pv(b):
    return [mf(O(db, q), VF(db), P(b, q), O(db, q), bk="v") for db in range(8) for q in range(4)]
def sm(b, qs):
    f = []
    for q in qs:
        for kb in range(2):
            r = S(b, kb, q)
            f += [f"    v_exp_f32 v{r}, v{r}", f"    v_exp_f32 v{r+1}, v{r+1}", f"    v_exp_f32 v{r+2}, v{r+2}",
                  f"    v_add_f32 v{L(q)}, v{r}, v{L(q)}", f"    v_add_f32 v{L(q)}, v{r+1}, v{L(q)}",
                  f"    v_exp_f32 v{r+3}, v{r+3}",
                  f"    v_cvt_pk_bf16_f32 v{P(b,q)+2*kb}, v{r}, v{r+1}", f"    v_add_f32 v{L(q)}, v{r+2}, v{L(q)}",
                  f"    v_add_f32 v{L(q)}, v{r+3}, v{L(q)}", f"    v_cvt_pk_bf16_f32 v{P(b,q)+2*kb+1}, v{r+2}, v{r+3}"]
    return f

def red32(v, t, op="v_add_f32"):
    return [f"    {op}_dpp {v}, {v}, {v} quad_perm:[1,0,3,2] row_mask:0xf bank_mask:0xf",
            f"    {op}_dpp {v}, {v}, {v} quad_perm:[2,3,0,1] row_mask:0xf bank_mask:0xf",
            f"    {op}_dpp {v}, {v}, {v} row_half_mirror row_mask:0xf bank_mask:0xf",
            f"    {op}_dpp {v}, {v}, {v} row_mirror row_mask:0xf bank_mask:0xf",
            f"    v_mov_b32 {t}, {v}", f"    v_permlane16_swap_b32 {v}, {t}", f"    {op} {v}, {v}, {t}"]

def gen_k2(name, stamp=False):
    o = []; e = o.append
    seg = {}
    def ST(k):
        if stamp:
            e(f"    s_memtime s[{64+2*k}:{65+2*k}]")
    e(f".globl {name}\n.p2align 8\n.type {name},@function\n{name}:")
    e(f"    s_cmp_ge_u32 s2, 256\n    s_cbranch_scc1 L_k2_end")
    e("    s_load_dwordx8 s[40:47], s[0:1], 0        ; x, k, v, wq")
    e("    s_load_dwordx2 s[62:63], s[0:1], 48       ; w_r")
    e("    s_load_dwordx4 s[92:95], s[0:1], 88")
    ST(0)
    if stamp: e("    s_memrealtime s[96:97]")
    e(f"""    v_lshrrev_b32 v20, 6, v0
    v_and_b32 v21, 63, v0                      ; lane
    v_readfirstlane_b32 {S_W}, v20
    s_and_b32 {S_T0}, s2, 7
    s_lshr_b32 {S_T1}, s2, 3
    s_and_b32 {S_T2}, {S_T1}, 3
    s_lshl_b32 {S_H}, {S_T0}, 2
    s_add_u32 {S_H}, {S_H}, {S_T2}             ; h = 4*xcd + (j&3)
    s_lshr_b32 {S_QB}, {S_T1}, 2               ; qb = j>>2
    s_lshl_b32 {S_T2}, {S_T2}, 1
    s_add_u32 {S_KC}, {S_QB}, {S_T2}
    s_and_b32 {S_KC}, {S_KC}, 7
    v_and_b32 v22, 15, v21                     ; i16
    v_lshrrev_b32 v23, 4, v21                  ; g
    v_and_b32 v24, 1, v23                      ; g&1
    v_lshrrev_b32 v25, 1, v23                  ; g>>1
    v_lshl_add_u32 v26, v24, 1, v25            ; sigma(g)
    v_bfe_u32 v27, v21, 2, 2                   ; r'
    v_and_b32 v28, 3, v21                      ; c'
    v_lshlrev_b32 {V_OX}, 14, v23
    v_bfe_u32 v29, v21, 3, 1
    v_lshl_add_u32 {V_OX}, v29, 10, {V_OX}
    v_and_b32 v29, 7, v21
    v_lshl_add_u32 {V_OX}, v29, 4, {V_OX}
    ; wq: (t>>4)*4*8192 + (t&15)*16
    v_lshlrev_b32 {V_OWQ}, 15, v23
    v_lshl_add_u32 {V_OWQ}, v22, 4, {V_OWQ}
    ; k: (t>>4)*4096 + (t&15)*16 + w*1024
    v_lshlrev_b32 {V_OK}, 12, v23
    v_lshl_add_u32 {V_OK}, v22, 4, {V_OK}
    v_lshl_add_u32 {V_OK}, v20, 10, {V_OK}
    ; v: (t>>4)*2048 + (t&15)*16 + w*512
    v_lshlrev_b32 {V_OV}, 11, v23
    v_lshl_add_u32 {V_OV}, v22, 4, {V_OV}
    v_lshl_add_u32 {V_OV}, v20, 9, {V_OV}
    s_mul_i32 {S_XW}, {S_W}, {XW}
    s_mul_i32 {S_WW}, {S_W}, {4*1056}
    s_add_u32 {S_WW}, {S_WW}, {WQOFF}
    s_lshl_b32 {S_XGW}, {S_W}, 16
    s_lshl_b32 {S_WGW}, {S_W}, 17
    s_mov_b32 {S_FILL}, {STG}
    s_mov_b32 {S_RD}, {STG}
    s_lshl_b32 {S_T0}, {S_H}, 3
    s_lshl_b32 {S_T1}, {S_W}, 1
    s_add_u32 {S_T3}, {S_T0}, {S_T1}
    s_lshl_b32 {S_T0}, {S_T3}, 10
    v_lshlrev_b32 v30, 5, v21
    v_and_b32 v31, 0x3ff, v30                  ; li*32
    s_waitcnt lgkmcnt(0)
    s_lshl_b32 {S_T1}, {S_QB}, 18
    s_add_u32 s4, s40, {S_T1}
    s_addc_u32 s5, s41, 0
    s_mov_b32 s6, 0x40000
    s_mov_b32 s7, 0x20000
    s_lshl_b32 {S_T1}, {S_H}, 8
    s_add_u32 s8, s46, {S_T1}
    s_addc_u32 s9, s47, 0
    s_sub_u32 s10, 0x400000, {S_T1}
    s_mov_b32 s11, 0x20000
    buffer_load_dwordx4 v[32:35], v30, {SRD_X}, {S_T0} offen
    buffer_load_dwordx4 v[36:39], v30, {SRD_X}, {S_T0} offen offset:16
    global_load_dwordx4 v[40:43], v31, s[62:63]
    global_load_dwordx4 v[44:47], v31, s[62:63] offset:16""")
    for st in range(3):
        o += stage_setup()
        for it in stage_dma(): o += it
    e(f"""    s_lshl_b32 {S_T1}, {S_H}, 19
    s_add_u32 {S_T1}, {S_T1}, {1536*256}
    s_add_u32 s12, s42, {S_T1}
    s_addc_u32 s13, s43, 0
    s_mov_b32 s14, 0x20000
    s_mov_b32 s15, 0x20000
    s_add_u32 s16, s44, {S_T1}
    s_addc_u32 s17, s45, 0
    s_mov_b32 s18, 0x20000
    s_mov_b32 s19, 0x20000
    s_mov_b32 s20, s94
    s_mov_b32 s21, s95
    s_mov_b32 s22, {WS_SIZE}
    s_mov_b32 s23, 0x20000
    s_mov_b32 s24, s92
    s_mov_b32 s25, s93
    s_mov_b32 {S_T1}, 0x64753120
    v_lshrrev_b32 v29, 1, v22
    v_lshlrev_b32 v29, 2, v29
    v_bfe_u32 v29, {S_T1}, v29, 4              ; n(i>>1)
    v_mul_u32_u24 {V_XC}, 1040, v29
    v_and_b32 v29, 1, v22
    v_lshl_add_u32 {V_XC}, v29, 7, {V_XC}
    v_lshl_add_u32 {V_XC}, v26, 4, {V_XC}
    v_add_u32 {V_XC}, {S_XW}, {V_XC}
    v_lshl_add_u32 v29, v24, 2, v27            ; (g&1)*4 + r'
    v_mul_u32_u24 v29, 1056, v29
    v_lshl_add_u32 v29, v28, 3, v29            ; + c'*8
    v_lshl_add_u32 {V_WC}, v25, 9, v29
    v_add_u32 {V_WC}, {WQOFF}, {V_WC}
    v_lshl_add_u32 {V_VC}, v25, 8, v29
    v_add_u32 {V_VC}, {KSZ}, {V_VC}
    s_mov_b32 {S_T1}, 0x8910
    v_lshrrev_b32 v29, 2, v22
    v_lshlrev_b32 v29, 2, v29
    v_bfe_u32 v29, {S_T1}, v29, 4              ; nbase(i>>2)
    v_lshl_add_u32 v29, v28, 1, v29            ; f(i)
    v_mul_u32_u24 {V_KC}, 1040, v29
    v_lshl_add_u32 {V_KC}, v26, 4, {V_KC}
    s_lshl_b32 {S_T2}, {S_W}, 2
    s_lshr_b32 {S_T1}, {S_T1}, {S_T2}
    s_and_b32 {S_T1}, {S_T1}, 15
    s_mul_i32 {S_KW}, {S_T1}, 1040
    s_mul_i32 {S_VW}, {S_W}, {2*1056}
    s_add_u32 {S_VW}, {S_VW}, {KSZ}
    v_mov_b32 v29, 0x3f803f80
    v_accvgpr_write_b32 a{ONES}, v29
    v_accvgpr_write_b32 a{ONES+1}, v29
    v_accvgpr_write_b32 a{ONES+2}, v29
    v_accvgpr_write_b32 a{ONES+3}, v29
    v_mov_b32 v16, 0
    v_mov_b32 v17, 0
    v_mov_b32 v18, 0
    v_mov_b32 v19, 0
    v_mov_b32 v29, {MISC+512}
    ds_write_b128 v29, v[16:19]
    ds_write_b128 v29, v[16:19] offset:16""")
    e("    s_waitcnt vmcnt(36)")
    X = lambda i: f"v{64+i}"
    for j in range(8):
        e(f"    v_lshlrev_b32 {X(2*j)}, 16, v{32+j}")
        e(f"    v_and_b32 {X(2*j+1)}, 0xffff0000, v{32+j}")
    e(f"    v_add_f32 v48, {X(0)}, {X(1)}")
    e(f"    v_add_f32 v49, {X(2)}, {X(3)}")
    for j in range(4, 16, 2):
        e(f"    v_add_f32 v48, {X(j)}, v48"); e(f"    v_add_f32 v49, {X(j+1)}, v49")
    e("    v_add_f32 v48, v48, v49")
    o += red32("v48", "v49")
    e(f"    v_mul_f32 v48, {f32(1/512)}, v48          ; mean")
    for j in range(16): e(f"    v_sub_f32 v{80+j}, {X(j)}, v48")
    e("    v_mul_f32 v50, v80, v80"); e("    v_mul_f32 v51, v81, v81")
    for j in range(2, 16, 2):
        e(f"    v_fmac_f32 v50, v{80+j}, v{80+j}"); e(f"    v_fmac_f32 v51, v{81+j}, v{81+j}")
    e("    v_add_f32 v50, v50, v51")
    o += red32("v50", "v51")
    e(f"""    v_mul_f32 v50, {f32(1/512)}, v50          ; var
    v_cvt_pk_bf16_f32 v51, v48, v50
    v_lshlrev_b32 v52, 16, v51
    v_and_b32 v50, 0xffff0000, v51
    v_add_f32 v50, {f32(1e-5)}, v50
    v_cvt_pk_bf16_f32 v50, v50, v50
    v_and_b32 v50, 0xffff0000, v50
    v_sqrt_f32 v50, v50
    v_cvt_pk_bf16_f32 v50, v50, v50
    v_and_b32 v50, 0xffff0000, v50
    v_rcp_f32 v53, v50                         ; rstd""")
    for j in range(16): e(f"    v_sub_f32 {X(j)}, {X(j)}, v52")
    for j in range(8): e(f"    v_cvt_pk_bf16_f32 v{80+j}, {X(2*j)}, {X(2*j+1)}")
    for j in range(8):
        e(f"    v_lshlrev_b32 {X(2*j)}, 16, v{80+j}")
        e(f"    v_and_b32 {X(2*j+1)}, 0xffff0000, v{80+j}")
    for j in range(16): e(f"    v_mul_f32 {X(j)}, {X(j)}, v53")
    for j in range(8): e(f"    v_cvt_pk_bf16_f32 v{80+j}, {X(2*j)}, {X(2*j+1)}")
    e("    v_mov_b32 v54, 0")
    for j in range(8): e(f"    v_dot2c_f32_bf16 v54, v{80+j}, v{40+j}")
    e("    s_nop 3")
    o += red32("v54", "v55")
    e(f"""    v_cvt_pk_bf16_f32 v54, v54, v54
    v_and_b32 v54, 0xffff0000, v54
    v_ashrrev_i32 v55, 31, v54
    v_or_b32 v55, 0x80000000, v55
    v_xor_b32 v54, v54, v55
    v_and_b32 v54, 0xffff0000, v54
    s_lshl_b32 {S_T0}, {S_QB}, 8
    s_add_u32 {S_T0}, {S_T0}, {S_T3}
    v_lshrrev_b32 v55, 5, v21
    v_add_u32 v55, {S_T0}, v55                 ; row
    v_sub_u32 v56, 0xffff, v55
    v_or_b32 v54, v54, v56
    v_lshlrev_b32 v56, 3, v55
    v_lshlrev_b32 v55, 2, v55
    s_mov_b32 {S_T0}, {WS_ST}
    s_mov_b32 {S_T1}, {WS_R}
    s_mov_b32 exec_lo, 1
    s_mov_b32 exec_hi, 1
    buffer_store_dwordx2 v[52:53], v56, {SRD_WS}, {S_T0} offen sc1
    buffer_store_dword v54, v55, {SRD_WS}, {S_T1} offen sc1
    s_mov_b64 exec, -1""")
    ST(1)
    o += q_addr()
    e("    s_waitcnt vmcnt(26)\n    s_barrier")
    ST(2)
    o += q_reads(0, 0)
    e("    s_waitcnt lgkmcnt(0)")
    o += weave(q_mfmas(0, first=True), fixed=[(q_reads(1, 1), 0, 26)])
    e(f"    s_mov_b32 {S_I}, 0")
    def body(dma, vm, extra_top=(), extra_mid=()):
        b = []
        top = ["    s_waitcnt lgkmcnt(0)", f"    s_waitcnt vmcnt({vm})", "    s_barrier"]
        h = len(dma) // 2
        m1 = q_mfmas(1); m0_ = q_mfmas(0)
        b += q_addr_early + top
        b += weave(m1, fixed=[(list(extra_top), 0, 2), (q_reads(0, 0), 0, 26), (dma[:h], 3, 34)])
        b += ["    s_waitcnt lgkmcnt(0)"]
        b += weave(m0_, fixed=[(list(extra_mid), 0, 2), (q_reads(1, 1), 0, 26), (dma[h:], 2, 34)])
        return b
    q_addr_early = q_addr()
    e("L_qloop:")
    qloop = body([stage_setup()] + stage_dma(), 12)
    qloop += [f"    s_cmp_lg_u32 {S_I}, 1", "    s_cbranch_scc1 L_nosig", f"    s_cmp_lg_u32 {S_W}, 0", "    s_cbranch_scc1 L_nosig",
              f"    s_lshl_b32 {S_T0}, {S_QB}, 2", f"    v_mov_b32 v16, {S_T0}", "    v_mov_b32 v17, 1", "    s_mov_b64 exec, 1",
              f"    global_atomic_add v16, v17, {S_DBG} sc1", "    s_mov_b64 exec, -1", "L_nosig:"]
    qloop += [f"    s_add_u32 {S_I}, {S_I}, 1", f"    s_cmp_lt_u32 {S_I}, 5", "    s_cbranch_scc1 L_qloop"]
    o += qloop
    ST(3)
    e(f"""    s_lshl_b32 {S_PAIR}, {S_QB}, 14
    s_sub_u32 {S_PAIR}, {S_PAIR}, 16384
    s_and_b32 {S_PAIR}, {S_PAIR}, 0x1ffff
    s_mov_b32 {S_FILL}, 0
    s_lshl_b32 {S_T0}, {S_QB}, 2
    v_mov_b32 v16, {S_T0}""")
    o += body([kv_setup()] + kv_dma(skip_v0=True), 12, extra_top=[[f"    global_load_dword v17, v16, {S_DBG} sc1"]])
    chk = [f"    v_readfirstlane_b32 {S_T0}, v17", f"    s_cmp_ge_u32 {S_T0}, 32", "    s_cbranch_scc1 L_ok",
           "L_spin:", "    s_sleep 2", f"    global_load_dword v17, v16, {S_DBG} sc1", "    s_waitcnt vmcnt(0)", f"    v_readfirstlane_b32 {S_T0}, v17",
           f"    s_cmp_lt_u32 {S_T0}, 32", "    s_cbranch_scc1 L_spin", "L_ok:",
           f"    s_lshl_b32 {S_T0}, {S_QB}, 11", f"    s_lshl_b32 {S_T1}, {S_W}, 9", f"    s_add_u32 {S_T0}, {S_T0}, {S_T1}",
           f"    s_add_u32 {S_T0}, {S_T0}, {WS_ST}", "    v_lshlrev_b32 v18, 3, v22"]
    for q in range(4):
        chk.append(f"    buffer_load_dwordx2 v[{24+2*q}:{25+2*q}], v18, {SRD_WS}, {S_T0} offen offset:{q*128} sc1")
    d6 = [kv_setup()] + kv_dma() + [kv_setup()] + kv_dma()
    o += body(d6, 6, extra_top=[chk])
    ST(4)
    e("    s_waitcnt lgkmcnt(0)\n    s_barrier")
    csw = [f"    v_lshlrev_b32 v19, 4, v23", f"    v_lshl_add_u32 v18, {S_W}, 7, v19", f"    v_add_u32 v18, {MISC}, v18", f"    v_add_u32 v19, {MISC}, v19",
           "    s_mov_b32 exec_lo, 0x00010001", "    s_mov_b32 exec_hi, 0x00010001",
           f"    ds_write_b128 v18, {a4r(CSA(0))}", f"    ds_write_b128 v18, {a4r(CSA(1))} offset:64", "    s_mov_b64 exec, -1"]
    csr = [f"    ds_read_b128 {v4r(64+4*db)}, v19 offset:{db*64}" for db in range(8)]
    m1 = q_mfmas(1)
    o += weave(m1, fixed=[([csw], 6, 7), ([kv_setup()] + kv_dma(), 8, 18),
                          ([["    s_waitcnt lgkmcnt(0)", "    s_waitcnt vmcnt(24)", "    s_barrier"]], 18, 19), (csr, 19, 27),
                          ([f"    v_mov_b32 {V_A0}, {V_KC}", f"    v_mov_b32 {V_A1}, {V_VC}"], 2, 4)])
    ST(5)
    o += k_reads(0)
    for q in range(4): e(f"    v_mul_f32 v{25+2*q}, {f32(CSC)}, v{25+2*q}")
    for q in range(4): e(f"    v_mov_b32 v{L(q)}, 0")
    e("    s_waitcnt lgkmcnt(8)")
    e(f"    v_mov_b32 {V_A2}, {MISC+512}")
    for q in range(4):
        st = f"v[{24+2*q}:{25+2*q}]"
        for db in range(8):
            for hlf in range(2):
                r = O(db, q) + 2 * hlf; c = 64 + 4 * db + 2 * hlf
                e(f"    v_pk_fma_f32 v[{r}:{r+1}], v[{c}:{c+1}], {st}, v[{r}:{r+1}] op_sel_hi:[1,0,1] neg_lo:[0,1,0] neg_hi:[0,1,0]")
        for db in range(8):
            for hlf in range(2):
                r = O(db, q) + 2 * hlf
                e(f"    v_pk_mul_f32 v[{r}:{r+1}], v[{r}:{r+1}], {st} op_sel:[0,1] op_sel_hi:[1,1]")
        for db in range(8):
            for hlf in range(2):
                r = O(db, q) + 2 * hlf
                e(f"    v_cvt_pk_bf16_f32 v{96+2*db+hlf}, v{r}, v{r+1}")
        for db in range(8):
            e(f"    ds_read_b128 {v4r(O(db,q))}, {V_A2}")
        for s in range(4):
            for hlf in range(2):
                e(f"    v_permlane16_swap_b32 v{96+4*s+hlf}, v{96+4*s+2+hlf}")
        for j in range(16): e(f"    v_accvgpr_write_b32 a{QF(q,0)+j}, v{96+j}")
    ST(6)
    def maxchain(q):
        a = S(0, 0, q); b = S(0, 1, q); n = NEGM(q)
        f = [f"    v_max3_f32 v{n}, v{a}, v{a+1}, v{a+2}", f"    v_max3_f32 v{n+1}, v{a+3}, v{b}, v{b+1}",
             f"    v_max3_f32 v{n}, v{n}, v{b+2}, v{b+3}", f"    v_max_f32 v{n}, v{n}, v{n+1}",
             f"    v_mov_b32 v{n+1}, v{n}", ["    s_nop 1", f"    v_permlane16_swap_b32 v{n}, v{n+1}"], f"    v_max_f32 v{n}, v{n}, v{n+1}",
             f"    v_mov_b32 v{n+1}, v{n}", ["    s_nop 1", f"    v_permlane32_swap_b32 v{n}, v{n+1}"], f"    v_max_f32 v{n}, v{n}, v{n+1}",
             f"    v_sub_f32 v{n}, 0, v{n}", f"    v_mov_b32 v{n+1}, v{n}", f"    v_mov_b32 v{n+2}, v{n}", f"    v_mov_b32 v{n+3}, v{n}"]
        f += [f"    v_add_f32 v{r+i}, v{n}, v{r+i}" for r in (a, b) for i in range(4)]
        return f
    e("    s_waitcnt lgkmcnt(0)")
    x0 = qk(0, czero=True)
    o += x0[:11]
    o += weave(x0[11:19], flow=maxchain(0))
    o += weave(x0[19:27], flow=maxchain(1))
    o += weave(x0[27:32], flow=maxchain(2))
    o += k_reads(1)
    for it in maxchain(3): o += (it if isinstance(it, list) else [it])
    e("    s_waitcnt lgkmcnt(0)")
    o += weave(qk(1), fixed=[(v_reads(1), 0, 26)], flow=sm(0, range(4)), flow_hi=31)
    ST(7)
    e(f"    s_mov_b32 {S_I}, 1\n    s_mov_b32 {S_RD}, {PS}")
    kvaddr = [f"    v_add_u32 {V_A0}, {S_RD}, {V_KC}", f"    v_add_u32 {V_A1}, {S_RD}, {V_VC}",
              f"    s_add_u32 {S_RD}, {S_RD}, {PS}", f"    s_cmp_ge_u32 {S_RD}, {4*PS}", f"    s_cselect_b32 {S_RD}, 0, {S_RD}"]
    e(".p2align 6\nL_aloop:")
    lp = []
    lp += kvaddr
    lp += ["    s_waitcnt lgkmcnt(0)", "    s_waitcnt vmcnt(16)", "    s_barrier"]
    setup = kv_setup() + [f"    s_cmp_ge_u32 {S_I}, 5", "    s_cselect_b32 s14, 0, s14", f"    s_cmp_ge_u32 {S_I}, 6", "    s_cselect_b32 s18, 0, s18"]
    d = kv_dma()
    lp += weave(pv(0), fixed=[(k_reads(0), 0, 24), ([setup] + d[:2], 22, 32)], flow=sm(1, (0, 1)))
    lp += ["    s_waitcnt lgkmcnt(0)"]
    lp += weave(qk(0), fixed=[(v_reads(0), 0, 26), (d[2:4], 26, 32)], flow=sm(1, (2, 3)), flow_hi=31)
    lp += ["    s_waitcnt lgkmcnt(0)"]
    lp += weave(pv(1), fixed=[(k_reads(1), 0, 24), (d[4:6], 24, 32)], flow=sm(0, (0, 1)))
    lp += ["    s_waitcnt lgkmcnt(0)"]
    lp += weave(qk(1), fixed=[(v_reads(1), 0, 26), (d[6:8], 26, 32)], flow=sm(0, (2, 3)), flow_hi=31)
    lp += [f"    s_add_u32 {S_I}, {S_I}, 1", f"    s_cmp_lt_u32 {S_I}, 8", "    s_cbranch_scc1 L_aloop"]
    o += lp
    seg["aloop"] = lp; seg["qloop"] = qloop
    ST(8)
    o += kvaddr[:2]
    e("    s_waitcnt lgkmcnt(0)\n    s_waitcnt vmcnt(16)\n    s_barrier")
    y14 = pv(0)
    o += weave(y14, flow=sm(1, range(4)))
    o += v_reads(0)
    for q in range(4): e(f"    v_mov_b32 v{64+q}, v{L(q)}")
    for q in range(4): e(f"    v_permlane16_swap_b32 v{L(q)}, v{64+q}")
    for q in range(4): e(f"    v_add_f32 v{L(q)}, v{L(q)}, v{64+q}")
    for q in range(4): e(f"    v_mov_b32 v{64+q}, v{L(q)}")
    for q in range(4): e(f"    v_permlane32_swap_b32 v{L(q)}, v{64+q}")
    for q in range(4): e(f"    v_add_f32 v{L(q)}, v{L(q)}, v{64+q}")
    for q in range(4): e(f"    v_rcp_f32 v{68+2*q}, v{L(q)}")
    e(f"""    s_lshl_b32 {S_T0}, {S_QB}, 21
    s_lshl_b32 {S_T1}, {S_W}, 19
    s_add_u32 {S_T0}, {S_T0}, {S_T1}
    s_lshl_b32 {S_T1}, {S_H}, 12
    s_add_u32 {S_T0}, {S_T0}, {S_T1}           ; (q16*128 + 4h)*1024 for q4=0
    v_and_b32 v76, 63, v0
    v_lshlrev_b32 v76, 4, v76
    s_waitcnt lgkmcnt(0)""")
    o += pv(1)
    ST(9)
    for u in range(4):
        for q in range(4):
            t = 80 + 4 * ((4 * u + q) % 8)
            for j, db in enumerate((2 * u, 2 * u + 1)):
                r = O(db, q)
                for hlf in range(2):
                    e(f"    v_pk_mul_f32 v[{r+2*hlf}:{r+2*hlf+1}], v[{r+2*hlf}:{r+2*hlf+1}], v[{68+2*q}:{69+2*q}] op_sel_hi:[1,0]")
                for hlf in range(2):
                    e(f"    v_cvt_pk_bf16_f32 v{t+2*j+hlf}, v{r+2*hlf}, v{r+2*hlf+1}")
            e(f"    s_add_u32 {S_T1}, {S_T0}, {q*131072}")
            e(f"    buffer_store_dwordx4 {v4r(t)}, v76, {SRD_WS}, {S_T1} offen offset:{u*1024}")
    if stamp:
        e("    s_waitcnt vmcnt(0)")
        ST(10)
        e("    s_memrealtime s[98:99]")
        e("    s_waitcnt lgkmcnt(0)")
        e(f"    s_lshl_b32 {S_T0}, s2, 8\n    s_lshl_b32 {S_T1}, {S_W}, 6\n    s_add_u32 {S_T0}, {S_T0}, {S_T1}\n    s_add_u32 {S_T0}, {S_T0}, 0x1080000")
        e("    v_mov_b32 v80, 0")
        for k in range(11):
            e(f"    v_mov_b32 v81, s{64+2*k}")
            e(f"    buffer_store_dword v81, v80, {SRD_WS}, {S_T0} offen offset:{4*k}")
        e(f"    v_mov_b32 v81, s96\n    buffer_store_dword v81, v80, {SRD_WS}, {S_T0} offen offset:48")
        e(f"    v_mov_b32 v81, s98\n    buffer_store_dword v81, v80, {SRD_WS}, {S_T0} offen offset:52")
    e("L_k2_end:\n    s_endpgm")
    lines = []
    for x in o: lines += x.split("\n")
    lines, n = fix_hazards(lines)
    print("k2: inserted wait states:", n, "lines", len(lines))
    for nm, lab, br in (("qloop", "L_qloop:", "s_cbranch_scc1 L_qloop"), ("aloop", "L_aloop:", "s_cbranch_scc1 L_aloop")):
        a = lines.index(lab); b = [i for i, l in enumerate(lines) if br in l][0]
        fix_hazards(lines[a:b+1] * 2, insert=False, tag=nm)
        print(nm, "nops in loop:", sum(1 for l in lines[a:b+1] if "; hz" in l), "instr", b - a)
    kd = f""".amdhsa_kernel {name}
  .amdhsa_next_free_vgpr 448
  .amdhsa_next_free_sgpr 102
  .amdhsa_accum_offset 256
  .amdhsa_group_segment_fixed_size 0
  .amdhsa_kernarg_size 104
  .amdhsa_user_sgpr_count 2
  .amdhsa_user_sgpr_kernarg_segment_ptr 1
  .amdhsa_system_sgpr_workgroup_id_x 1
.end_amdhsa_kernel"""
    return "\n".join(lines), kd

if __name__ == "__main__":
    b, kd = gen_k2("attn_kernel", stamp=True)
    open("k2_only.s", "w").write(
        f"; @launch kernel=attn_kernel grid=(256,1,1) block=(256,1,1) lds={LDS_K2}\n"
        '.amdgcn_target "amdgcn-amd-amdhsa--gfx950"\n.text\n' + b + '\n.section .rodata,"a"\n.p2align 6\n' + kd + "\n")
```

```python
from asmlib import *
from k2 import f32, WS_O, WS_ST, WS_R, WS_Y, WS_SIZE, red32

RW = 17408
SL = 4224
MOE = 4 * RW
GA = MOE; UA = MOE + 16384; DA = MOE + 32768
XN = DA + 16 * 1056
UU = XN + 2048
RS = UU + 768
LDS_K3 = RS + 256
NPROD = 86

def mf(d, a, b, c, dk="v", ak="v", bk="v"):
    cs = c if isinstance(c, str) else f"{dk}[{c}:{c+3}]"
    return f"    v_mfma_f32_16x16x32_bf16 {dk}[{d}:{d+3}], {ak}[{a}:{a+3}], {bk}[{b}:{b+3}], {cs}"
v4r = lambda r: f"v[{r}:{r+3}]"

ACC = lambda nb, q: 64 + 16 * nb + 4 * q
AF = lambda st, nb: 32 + 16 * st + 4 * nb
OF = lambda sl, q: 128 + 16 * sl + 4 * q
SRD_WO, SRD_WS, SRD_X, SRD_OUT = "s[4:7]", "s[8:11]", "s[12:15]", "s[16:19]"
SRD_G, SRD_U, SRD_D, SRD_Y = "s[20:23]", "s[24:27]", "s[28:31]", "s[32:35]"
S_W = "s3"; S_QT, S_NT = "s36", "s37"
S_T0, S_T1, S_T2, S_T3 = "s38", "s39", "s40", "s41"
S_KS, S_RHO, S_OB, S_WB, S_LB, S_I = "s42", "s43", "s44", "s45", "s46", "s47"
S_OG, S_WG = "s48", "s49"
S_DBG = "s[50:51]"

def bfround(d, s):
    return [f"    v_cvt_pk_bf16_f32 {d}, {s}, {s}", f"    v_and_b32 {d}, 0xffff0000, {d}"]
LOG2E = 1.4426950408889634
def sigmoid(d, s, t):
    return [f"    v_mul_f32 {t}, {f32(-LOG2E)}, {s}", f"    v_exp_f32 {t}, {t}", f"    v_add_f32 {t}, 1.0, {t}", f"    v_rcp_f32 {d}, {t}"]

def gen_k3(name, stamp=False):
    o = []; e = o.append
    def ST(k):
        if stamp: e(f"    s_memtime s[{64+2*k}:{65+2*k}]")
    e(f".globl {name}\n.p2align 8\n.type {name},@function\n{name}:")
    e(f"    s_cmp_ge_u32 s2, 256\n    s_cbranch_scc1 L_k3_end")
    e("""    s_load_dwordx2 s[52:53], s[0:1], 0        ; x
    s_load_dwordx2 s[54:55], s[0:1], 32       ; wo
    s_load_dwordx4 s[56:59], s[0:1], 56
    s_load_dwordx8 s[84:91], s[0:1], 72""")
    ST(0)
    if stamp: e("    s_memrealtime s[96:97]")
    e(f"""    v_lshrrev_b32 v20, 6, v0
    v_and_b32 v21, 63, v0                      ; lane
    v_readfirstlane_b32 {S_W}, v20
    s_and_b32 {S_T0}, s2, 7
    s_lshr_b32 {S_T1}, s2, 3
    s_and_b32 {S_T2}, {S_T1}, 3
    s_lshl_b32 {S_QT}, {S_T0}, 2
    s_add_u32 {S_QT}, {S_QT}, {S_T2}
    s_lshr_b32 {S_NT}, {S_T1}, 2
    s_lshl_b32 {S_T2}, {S_T2}, 1
    s_add_u32 {S_RHO}, {S_NT}, {S_T2}
    s_and_b32 {S_RHO}, {S_RHO}, 7
    v_and_b32 v22, 15, v21                     ; i16
    v_lshrrev_b32 v23, 4, v21                  ; g
    v_bfe_u32 v27, v21, 2, 2                   ; r'
    v_and_b32 v28, 3, v21                      ; c'
    s_waitcnt lgkmcnt(0)
    s_mov_b32 s4, s54
    s_mov_b32 s5, s55
    s_mov_b32 s6, 0x400000
    s_mov_b32 s7, 0x20000
    s_mov_b32 s8, s90
    s_mov_b32 s9, s91
    s_mov_b32 s10, {WS_SIZE}
    s_mov_b32 s11, 0x20000
    s_mov_b32 s12, s52
    s_mov_b32 s13, s53
    s_mov_b32 s14, 0x200000
    s_mov_b32 s15, 0x20000
    s_mov_b32 s16, s86
    s_mov_b32 s17, s87
    s_mov_b32 s18, 0x200000
    s_mov_b32 s19, 0x20000
    s_mov_b32 s20, s56
    s_mov_b32 s21, s57
    s_mov_b32 s22, {512*2752}
    s_mov_b32 s23, 0x20000
    s_mov_b32 s24, s58
    s_mov_b32 s25, s59
    s_mov_b32 s26, {512*2752}
    s_mov_b32 s27, 0x20000
    s_mov_b32 s28, s84
    s_mov_b32 s29, s85
    s_mov_b32 s30, {1376*1024}
    s_mov_b32 s31, 0x20000
    s_add_u32 s32, s90, {WS_Y}
    s_addc_u32 s33, s91, 0
    s_mov_b32 s34, {NPROD*4096}
    s_mov_b32 s35, 0x20000
    s_mov_b32 s50, s88
    s_mov_b32 s51, s89
    s_cmp_eq_u32 {S_W}, 4
    s_cbranch_scc1 L_moe""")
    e(f"""    v_lshlrev_b32 v1, 4, v21
    v_lshrrev_b32 v2, 3, v21
    v_lshlrev_b32 v2, 12, v2
    v_and_b32 v3, 7, v21
    v_lshl_add_u32 v2, v3, 4, v2
    s_mul_i32 {S_LB}, {S_W}, {RW}
    v_mul_u32_u24 v3, 1056, v27
    v_lshl_add_u32 v3, v23, 7, v3
    v_lshl_add_u32 v3, v28, 3, v3
    v_add_u32 v3, {S_LB}, v3
    s_lshl_b32 {S_OB}, {S_QT}, 19
    s_lshl_b32 {S_T0}, {S_W}, 15
    s_add_u32 {S_OB}, {S_OB}, {S_T0}           ; (4qt*128 + 32w)*1024
    s_lshl_b32 {S_WB}, {S_W}, 20
    s_lshl_b32 {S_T0}, {S_NT}, 7
    s_add_u32 {S_WB}, {S_WB}, {S_T0}           ; 1024w*1024 + nt*128
    s_mov_b32 {S_KS}, 0""")
    def nxt():
        return [f"    s_xor_b32 {S_T0}, {S_KS}, {S_RHO}", f"    s_lshl_b32 {S_T1}, {S_T0}, 10", f"    s_add_u32 {S_OG}, {S_OB}, {S_T1}",
                f"    s_lshl_b32 {S_T1}, {S_T0}, 15", f"    s_add_u32 {S_WG}, {S_WB}, {S_T1}", f"    s_add_u32 {S_KS}, {S_KS}, 1",
                f"    s_and_b32 {S_KS}, {S_KS}, 31"]
    def wdma(sl, ee):
        return [f"    s_add_u32 m0, {S_LB}, {sl*SL + ee*32}", "    s_nop 0",
                f"    buffer_load_dwordx4 v2, {SRD_WO}, {S_WG} offen offset:{ee*1024} lds"]
    def oload(sl, q):
        return [f"    s_add_u32 {S_T2}, {S_OG}, {q*131072}", f"    buffer_load_dwordx4 {v4r(OF(sl,q))}, v1, {SRD_WS}, {S_T2} offen"]
    def areads(st, sl):
        return [f"    ds_read_b64_tr_b16 v[{AF(st,nb)+2*p}:{AF(st,nb)+2*p+1}], v3 offset:{sl*SL + p*512 + nb*32}" for nb in range(4) for p in range(2)]
    for sl in range(4):
        o += nxt()
        for ee in range(4): o += wdma(sl, ee)
        for q in range(4): o += oload(sl, q)
    e(f"""    v_lshrrev_b32 v4, 2, v0                    ; q (0..63)
    v_and_b32 v5, 3, v0                        ; c
    v_lshlrev_b32 v6, 10, v4
    v_lshl_add_u32 v6, v5, 5, v6               ; q*1024 + c*32
    s_lshl_b32 {S_T3}, {S_QT}, 16
    s_lshl_b32 {S_T0}, {S_NT}, 7
    s_add_u32 {S_T3}, {S_T3}, {S_T0}
    v_lshlrev_b32 v7, 3, v4
    s_lshl_b32 {S_T0}, {S_QT}, 9
    s_add_u32 {S_T0}, {S_T0}, {WS_ST}
    buffer_load_dwordx4 v[8:11], v6, {SRD_X}, {S_T3} offen
    buffer_load_dwordx4 v[12:15], v6, {SRD_X}, {S_T3} offen offset:16
    buffer_load_dwordx2 v[16:17], v7, {SRD_WS}, {S_T0} offen""")
    for r in range(64, 128): e(f"    v_mov_b32 v{r}, 0")
    e("    s_waitcnt vmcnt(31)")
    ST(1)
    o += areads(0, 0)
    e(f"    s_mov_b32 {S_I}, 0")
    e(".p2align 6\nL_gloop:")
    lp = []
    for t in range(4):
        st = t & 1
        lp += [f"    s_waitcnt vmcnt(20)", "    s_waitcnt lgkmcnt(0)"]
        lp += areads(st ^ 1, (t + 1) & 3)
        lp += nxt()
        if t == 0:
            lp += [f"    s_cmp_ge_u32 {S_I}, 7", "    s_cselect_b32 s6, 0, s6", "    s_cselect_b32 s10, 0, s10"]
        for q in range(4):
            for nb in range(4):
                lp.append(mf(ACC(nb, q), AF(st, nb), OF(t, q), ACC(nb, q)))
                if q == 0: lp += wdma(t, nb)
            if q >= 1: lp += oload(t, q - 1)
        lp += oload(t, 3)
    lp += [f"    s_add_u32 {S_I}, {S_I}, 1", f"    s_cmp_lt_u32 {S_I}, 8", "    s_cbranch_scc1 L_gloop"]
    o += lp
    ST(2)
    e(f"""    s_waitcnt vmcnt(0) lgkmcnt(0)
    v_mul_u32_u24 v18, 272, v22
    v_lshl_add_u32 v18, v23, 4, v18
    v_add_u32 v18, {S_LB}, v18""")
    for q in range(4):
        for nb in range(4):
            e(f"    ds_write_b128 v18, {v4r(ACC(nb,q))} offset:{q*16*272 + nb*64}")
    e(f"""    v_mul_u32_u24 v18, 272, v4
    v_lshl_add_u32 v18, v5, 6, v18
    v_lshlrev_b32 v19, 2, v4
    v_add_u32 v19, {RS}, v19
    s_waitcnt lgkmcnt(0)
    s_barrier""")
    ST(3)
    e("    ds_read_b32 v19, v19")
    for w in range(4):
        for j in range(4):
            e(f"    ds_read_b128 {v4r(64+16*w+4*j)}, v18 offset:{w*RW + j*16}")
    for j in range(8):
        e(f"    v_lshlrev_b32 v{128+2*j}, 16, v{8+j}"); e(f"    v_and_b32 v{129+2*j}, 0xffff0000, v{8+j}")
    for j in range(16): e(f"    v_sub_f32 v{144+j}, v{128+j}, v16")
    for j in range(8): e(f"    v_cvt_pk_bf16_f32 v{32+j}, v{144+2*j}, v{145+2*j}")
    for j in range(8):
        e(f"    v_lshlrev_b32 v{144+2*j}, 16, v{32+j}"); e(f"    v_and_b32 v{145+2*j}, 0xffff0000, v{32+j}")
    for j in range(16): e(f"    v_mul_f32 v{144+j}, v{144+j}, v17")
    for j in range(8): e(f"    v_cvt_pk_bf16_f32 v{32+j}, v{144+2*j}, v{145+2*j}")
    e("    s_waitcnt lgkmcnt(15)")
    e("    v_lshl_add_u32 v19, v5, 6, v19")
    for j in range(4): e(f"    ds_read_b128 {v4r(160+4*j)}, v19 offset:{j*16}")
    for j in range(8):
        e(f"    v_lshlrev_b32 v{144+2*j}, 16, v{32+j}"); e(f"    v_and_b32 v{145+2*j}, 0xffff0000, v{32+j}")
    e("    s_waitcnt lgkmcnt(0)")
    for j in range(16): e(f"    v_add_f32 v{144+j}, v{144+j}, v{160+j}")
    for j in range(8): e(f"    v_cvt_pk_bf16_f32 v{32+j}, v{144+2*j}, v{145+2*j}")
    for j in range(8):
        e(f"    v_lshlrev_b32 v{144+2*j}, 16, v{32+j}"); e(f"    v_and_b32 v{145+2*j}, 0xffff0000, v{32+j}")
    for j in range(16): e(f"    v_mul_f32 v{160+j}, {f32(-LOG2E)}, v{144+j}")
    for j in range(16): e(f"    v_exp_f32 v{160+j}, v{160+j}")
    for j in range(16): e(f"    v_add_f32 v{64+j}, v{64+j}, v{80+j}")
    for j in range(16): e(f"    v_add_f32 v{160+j}, 1.0, v{160+j}")
    for j in range(16): e(f"    v_rcp_f32 v{160+j}, v{160+j}")
    for j in range(16): e(f"    v_add_f32 v{96+j}, v{96+j}, v{112+j}")
    for j in range(16): e(f"    v_mul_f32 v{144+j}, v{144+j}, v{160+j}")
    for j in range(16): e(f"    v_add_f32 v{64+j}, v{64+j}, v{96+j}")
    for j in range(8): e(f"    v_cvt_pk_bf16_f32 v{32+j}, v{144+2*j}, v{145+2*j}")
    for j in range(8): e(f"    v_cvt_pk_bf16_f32 v{40+j}, v{64+2*j}, v{65+2*j}")
    for j in range(8):
        e(f"    v_lshlrev_b32 v{144+2*j}, 16, v{32+j}"); e(f"    v_and_b32 v{145+2*j}, 0xffff0000, v{32+j}")
        e(f"    v_lshlrev_b32 v{64+2*j}, 16, v{40+j}"); e(f"    v_and_b32 v{65+2*j}, 0xffff0000, v{40+j}")
    for j in range(16): e(f"    v_mul_f32 v{64+j}, v{64+j}, v{144+j}")
    for j in range(8): e(f"    v_cvt_pk_bf16_f32 v{32+j}, v{64+2*j}, v{65+2*j}")
    for j in range(8):
        e(f"    v_lshlrev_b32 v{64+2*j}, 16, v{32+j}"); e(f"    v_and_b32 v{65+2*j}, 0xffff0000, v{32+j}")
    for j in range(16): e(f"    v_add_f32 v{64+j}, v{64+j}, v{128+j}")
    for j in range(8): e(f"    v_cvt_pk_bf16_f32 v{32+j}, v{64+2*j}, v{65+2*j}")
    e(f"    buffer_store_dwordx4 v[32:35], v6, {SRD_OUT}, {S_T3} offen")
    e(f"    buffer_store_dwordx4 v[36:39], v6, {SRD_OUT}, {S_T3} offen offset:16")
    ST(4)
    e("    s_branch L_k3_fin")
    e("L_moe:")
    e(f"""    v_lshlrev_b32 v1, 4, v21
    s_mov_b32 {S_T0}, {WS_R}""")
    for j in range(8):
        e(f"    s_add_u32 {S_T1}, {S_T0}, {j*1024}")
        e(f"    buffer_load_dwordx4 {v4r(32+4*j)}, v1, {SRD_WS}, {S_T1} offen")
    e(f"""    s_cmp_ge_u32 s2, {NPROD}
    s_cbranch_scc1 L_moe_nodma
    v_lshrrev_b32 v2, 1, v21
    v_mul_u32_u24 v2, 2752, v2
    v_and_b32 v3, 1, v21
    v_lshl_add_u32 v2, v3, 4, v2
    s_lshl_b32 {S_T0}, s2, 5
    s_mov_b32 {S_T1}, {GA}
    s_mov_b32 {S_I}, 0
L_moe_d1:
    s_mov_b32 m0, {S_T1}
    s_nop 0
    buffer_load_dwordx4 v2, {SRD_G}, {S_T0} offen lds
    s_add_u32 m0, {S_T1}, 16384
    s_nop 0
    buffer_load_dwordx4 v2, {SRD_U}, {S_T0} offen lds
    s_add_u32 {S_T0}, {S_T0}, {32*2752}
    s_add_u32 {S_T1}, {S_T1}, 1024
    s_add_u32 {S_I}, {S_I}, 1
    s_cmp_lt_u32 {S_I}, 16
    s_cbranch_scc1 L_moe_d1
    s_lshl_b32 {S_T0}, s2, 14
    s_mov_b32 {S_T1}, {DA}
    s_mov_b32 {S_I}, 0
L_moe_d2:
    s_mov_b32 m0, {S_T1}
    s_nop 0
    buffer_load_dwordx4 v1, {SRD_D}, {S_T0} offen lds
    s_add_u32 {S_T0}, {S_T0}, 1024
    s_add_u32 {S_T1}, {S_T1}, 1056
    s_add_u32 {S_I}, {S_I}, 1
    s_cmp_lt_u32 {S_I}, 16
    s_cbranch_scc1 L_moe_d2
    s_waitcnt vmcnt(48)
    s_branch L_moe_top
L_moe_nodma:
    s_waitcnt vmcnt(0)
L_moe_top:""")
    ST(1)
    e("    v_max_u32 v4, v32, v33\n    v_min_u32 v5, v32, v33")
    for j in range(34, 64):
        e(f"    v_med3_u32 v5, v4, v5, v{j}"); e(f"    v_max_u32 v4, v4, v{j}")
    def comb(): return ["    v_min_u32 v8, v4, v6", "    v_max_u32 v4, v4, v6", "    v_max3_u32 v5, v5, v7, v8"]
    for md in ("quad_perm:[1,0,3,2]", "quad_perm:[2,3,0,1]", "row_half_mirror", "row_mirror"):
        e(f"    v_mov_b32_dpp v6, v4 {md} row_mask:0xf bank_mask:0xf"); e(f"    v_mov_b32_dpp v7, v5 {md} row_mask:0xf bank_mask:0xf")
        o += comb()
    for sw in ("v_permlane16_swap_b32", "v_permlane32_swap_b32"):
        e("    v_mov_b32 v6, v4\n    v_mov_b32 v7, v5")
        e(f"    {sw} v4, v6\n    {sw} v5, v7")
        o += comb()
    S_K0, S_K1, S_I0, S_I1 = "s60", "s61", "s62", "s63"
    e(f"""    v_readfirstlane_b32 {S_K0}, v4
    v_readfirstlane_b32 {S_K1}, v5
    s_not_b32 {S_I0}, {S_K0}
    s_and_b32 {S_I0}, {S_I0}, 2047
    s_not_b32 {S_I1}, {S_K1}
    s_and_b32 {S_I1}, {S_I1}, 2047
    s_cmp_ge_u32 s2, {NPROD}
    s_cbranch_scc1 L_moe_cons
    v_mov_b32 v6, {S_I0}
    v_mov_b32 v7, {S_I1}
    v_cmp_gt_u32 vcc, 32, v21
    v_cndmask_b32 v6, v7, v6, vcc              ; row
    v_and_b32 v7, 31, v21
    v_lshlrev_b32 v7, 5, v7
    v_lshl_add_u32 v7, v6, 10, v7
    v_lshlrev_b32 v6, 3, v6
    s_mov_b32 {S_T0}, {WS_ST}
    buffer_load_dwordx4 v[8:11], v7, {SRD_X}, 0 offen
    buffer_load_dwordx4 v[12:15], v7, {SRD_X}, 0 offen offset:16
    buffer_load_dwordx2 v[16:17], v6, {SRD_WS}, {S_T0} offen
    v_lshlrev_b32 v18, 5, v21
    v_add_u32 v18, {XN}, v18
    v_and_b32 v19, 1, v21
    v_lshlrev_b32 v19, 10, v19
    v_lshl_add_u32 v19, v23, 4, v19
    v_add_u32 v19, {XN}, v19
    v_lshl_add_u32 v24, v23, 3, v27
    v_lshlrev_b32 v24, 5, v24
    v_lshl_add_u32 v24, v28, 3, v24
    v_add_u32 v24, {GA}, v24
    v_lshl_add_u32 v25, v23, 2, v27
    v_mul_u32_u24 v25, 1056, v25
    v_lshl_add_u32 v25, v28, 3, v25
    v_add_u32 v25, {DA}, v25
    s_waitcnt vmcnt(0)""")
    ST(2)
    for j in range(8):
        e(f"    v_lshlrev_b32 v{32+2*j}, 16, v{8+j}"); e(f"    v_and_b32 v{33+2*j}, 0xffff0000, v{8+j}")
    for j in range(16): e(f"    v_sub_f32 v{32+j}, v{32+j}, v16")
    for j in range(8): e(f"    v_cvt_pk_bf16_f32 v{8+j}, v{32+2*j}, v{33+2*j}")
    for j in range(8):
        e(f"    v_lshlrev_b32 v{32+2*j}, 16, v{8+j}"); e(f"    v_and_b32 v{33+2*j}, 0xffff0000, v{8+j}")
    for j in range(16): e(f"    v_mul_f32 v{32+j}, v{32+j}, v17")
    for j in range(8): e(f"    v_cvt_pk_bf16_f32 v{8+j}, v{32+2*j}, v{33+2*j}")
    e("    ds_write_b128 v18, v[8:11]\n    ds_write_b128 v18, v[12:15] offset:16\n    s_waitcnt lgkmcnt(0)")
    for c in range(4):
        for k in range(4):
            ks = 4 * c + k
            e(f"    ds_read_b128 {v4r(32+4*k)}, v19 offset:{ks*64}")
            for p in range(2):
                e(f"    ds_read_b64_tr_b16 v[{48+4*k+2*p}:{49+4*k+2*p}], v24 offset:{ks*1024 + p*128}")
                e(f"    ds_read_b64_tr_b16 v[{64+4*k+2*p}:{65+4*k+2*p}], v24 offset:{16384 + ks*1024 + p*128}")
        e("    s_waitcnt lgkmcnt(0)")
        for k in range(4):
            first = (c == 0 and k == 0)
            e(mf(80, 48 + 4 * k, 32 + 4 * k, "0" if first else 80))
            e(mf(84, 64 + 4 * k, 32 + 4 * k, "0" if first else 84))
    for nb in range(32):
        e(f"    ds_read_b64_tr_b16 v[{128+2*nb}:{129+2*nb}], v25 offset:{nb*32}")
    for r in range(4): o += bfround(f"v{80+r}", f"v{80+r}")
    for r in range(4): o += bfround(f"v{84+r}", f"v{84+r}")
    for r in range(4): o += sigmoid(f"v{88+r}", f"v{80+r}", f"v{88+r}")
    for r in range(4): e(f"    v_mul_f32 v{80+r}, v{80+r}, v{88+r}")
    for r in range(4): o += bfround(f"v{80+r}", f"v{80+r}")
    for r in range(4): e(f"    v_mul_f32 v{80+r}, v{80+r}, v{84+r}")
    e("    v_cvt_pk_bf16_f32 v92, v80, v81\n    v_cvt_pk_bf16_f32 v93, v82, v83")
    e(f"""    v_and_b32 v26, 1, v21
    v_lshlrev_b32 v26, 11, v26
    v_lshl_add_u32 v26, v23, 4, v26
    s_lshl_b32 {S_T0}, s2, 12
    v_add_u32 v26, {S_T0}, v26
    s_waitcnt lgkmcnt(0)""")
    for half in range(2):
        for nb in range(16 * half, 16 * half + 16):
            d = 32 + 4 * (nb % 16) if nb % 16 < 12 else 96 + 4 * (nb % 16 - 12)
            e(f"    v_mfma_f32_16x16x16_bf16 {v4r(d)}, v[{128+2*nb}:{129+2*nb}], v[92:93], 0")
        e("    s_mov_b32 exec_lo, 0x00030003\n    s_mov_b32 exec_hi, 0x00030003")
        for nb in range(16 * half, 16 * half + 16):
            d = 32 + 4 * (nb % 16) if nb % 16 < 12 else 96 + 4 * (nb % 16 - 12)
            e(f"    buffer_store_dwordx4 {v4r(d)}, v26, {SRD_Y}, 0 offen offset:{nb*64} sc1")
        e("    s_mov_b64 exec, -1")
    e(f"""    s_waitcnt vmcnt(0)
    v_mov_b32 v6, 0
    v_mov_b32 v7, 1
    s_mov_b64 exec, 1
    global_atomic_add v6, v7, {S_DBG} sc1
    s_mov_b64 exec, -1
L_moe_cons:""")
    ST(3)
    e(f"""    s_lshl_b32 {S_T0}, {S_QT}, 6
    v_add_u32 v6, {S_T0}, v21
    v_mov_b32 v7, {UU+512}
    v_mov_b32 v8, {UU}
    v_cmp_eq_u32 vcc, {S_I0}, v6
    v_cndmask_b32 v7, v7, v8, vcc
    v_mov_b32 v8, {UU+256}
    v_cmp_eq_u32 vcc, {S_I1}, v6
    v_cndmask_b32 v7, v7, v8, vcc
    v_lshlrev_b32 v9, 2, v21
    v_add_u32 v10, {RS}, v9
    ds_write_b32 v10, v7
    v_add_u32 v10, {UU+512}, v9
    v_mov_b32 v11, 0
    ds_write_b32 v10, v11
    v_lshlrev_b32 v12, 12, v23
    v_lshl_add_u32 v12, v22, 4, v12
    s_lshl_b32 {S_T0}, {S_NT}, 8
    v_add_u32 v12, {S_T0}, v12
    v_lshlrev_b32 v13, 4, v22
    v_add_u32 v13, {UU}, v13
    s_mov_b32 {S_I}, 0
L_tok:
    s_lshr_b32 {S_T0}, {S_I0}, 6
    s_cmp_lg_u32 {S_T0}, {S_QT}
    s_cbranch_scc1 L_tok_next
    v_mov_b32 v6, 0
L_poll:
    global_load_dword v7, v6, {S_DBG} sc1
    s_waitcnt vmcnt(0)
    v_readfirstlane_b32 {S_T0}, v7
    s_cmp_ge_u32 {S_T0}, {NPROD}
    s_cbranch_scc1 L_polled
    s_sleep 4
    s_branch L_poll
L_polled:
    v_mov_b32 v14, v12""")
    for i in range(22):
        e(f"    buffer_load_dwordx4 {v4r(32+4*i)}, v14, {SRD_Y}, 0 offen sc1")
        e("    v_add_u32 v14, 16384, v14")
    e(f"""    s_and_b32 {S_T0}, {S_K0}, 0xffff0000
    s_xor_b32 {S_T1}, {S_T0}, 0x80000000
    s_xor_b32 {S_T2}, {S_T0}, 0xffff0000
    s_bitcmp1_b32 {S_T0}, 31
    s_cselect_b32 {S_T0}, {S_T1}, {S_T2}
    v_mov_b32 v15, {S_T0}""")
    o += sigmoid("v15", "v15", "v16") + bfround("v15", "v15")
    e("    s_waitcnt vmcnt(0)")
    for i in range(1, 22):
        for r in range(4): e(f"    v_add_f32 v{32+r}, v{32+r}, v{32+4*i+r}")
    for sw in ("v_permlane16_swap_b32", "v_permlane32_swap_b32"):
        for r in range(4): e(f"    v_mov_b32 v{36+r}, v{32+r}")
        for r in range(4): e(f"    {sw} v{32+r}, v{36+r}")
        for r in range(4): e(f"    v_add_f32 v{32+r}, v{32+r}, v{36+r}")
    for r in range(4): o += bfround(f"v{32+r}", f"v{32+r}")
    for r in range(4): e(f"    v_mul_f32 v{32+r}, v{32+r}, v15")
    for r in range(4): o += bfround(f"v{32+r}", f"v{32+r}")
    e(f"""    ds_write_b128 v13, v[32:35]
L_tok_next:
    s_mov_b32 {S_I0}, {S_I1}
    s_mov_b32 {S_K0}, {S_K1}
    v_add_u32 v12, 2048, v12
    v_add_u32 v13, 256, v13
    s_add_u32 {S_I}, {S_I}, 1
    s_cmp_lt_u32 {S_I}, 2
    s_cbranch_scc1 L_tok
    s_waitcnt lgkmcnt(0)""")
    ST(4)
    e("    s_barrier")
    e("L_k3_fin:")
    if stamp:
        e("    s_waitcnt vmcnt(0)")
        ST(5)
        e("    s_memrealtime s[98:99]")
        e("    s_waitcnt lgkmcnt(0)")
        e(f"    s_mov_b32 s10, {WS_SIZE}")
        e(f"    s_lshl_b32 {S_T0}, s2, 9\n    s_lshl_b32 {S_T1}, {S_W}, 6\n    s_add_u32 {S_T0}, {S_T0}, {S_T1}\n    s_add_u32 {S_T0}, {S_T0}, 0x10C0000")
        e("    v_mov_b32 v80, 0")
        for k in range(6):
            e(f"    v_mov_b32 v81, s{64+2*k}")
            e(f"    buffer_store_dword v81, v80, {SRD_WS}, {S_T0} offen offset:{4*k}")
        e(f"    v_mov_b32 v81, s96\n    buffer_store_dword v81, v80, {SRD_WS}, {S_T0} offen offset:48")
        e(f"    v_mov_b32 v81, s98\n    buffer_store_dword v81, v80, {SRD_WS}, {S_T0} offen offset:52")
    e("L_k3_end:\n    s_endpgm")
    lines = []
    for x in o: lines += x.split("\n")
    lines, n = fix_hazards(lines)
    print("k3: inserted wait states:", n, "lines", len(lines))
    a = lines.index("L_gloop:"); b = [i for i, l in enumerate(lines) if "s_cbranch_scc1 L_gloop" in l][0]
    fix_hazards(lines[a:b+1] * 2, insert=False, tag="gloop")
    kd = f""".amdhsa_kernel {name}
  .amdhsa_next_free_vgpr 192
  .amdhsa_next_free_sgpr 102
  .amdhsa_accum_offset 192
  .amdhsa_group_segment_fixed_size 0
  .amdhsa_kernarg_size 104
  .amdhsa_user_sgpr_count 2
  .amdhsa_user_sgpr_kernarg_segment_ptr 1
  .amdhsa_system_sgpr_workgroup_id_x 1
.end_amdhsa_kernel"""
    return "\n".join(lines), kd
```

```python
import sys
from k2 import gen_k2, LDS_K2
from k3 import gen_k3, LDS_K3
def build(path, stamp):
    hdr = open("recurrent_scan__sliding_block_cached__moe_arch_mod__prompt.s.ref").read().split("\n")
    hdr = [l for l in hdr if l.startswith(";") and "@launch" not in l and "Override" not in l and "grid=ceil" not in l]
    b2, kd2 = gen_k2("attn_kernel", stamp); b3, kd3 = gen_k3("oproj_kernel", stamp)
    s = "\n".join(hdr) + f"\n; @launch kernel=attn_kernel grid=(256,1,1) block=(256,1,1) lds={LDS_K2}\n" \
        f"; @launch kernel=oproj_kernel grid=(256,1,1) block=(320,1,1) lds={LDS_K3}\n" \
        '.amdgcn_target "amdgcn-amd-amdhsa--gfx950"\n.text\n' + b2 + "\n" + b3 + \
        '\n.section .rodata,"a"\n.p2align 6\n' + kd2 + "\n.p2align 6\n" + kd3 + "\n"
    open(path, "w").write(s)
build("full_stamp.s", True)
build("recurrent_scan__sliding_block_cached__moe_arch_mod__prompt.s", False)
```

```python
import struct, os, sys
from asmlib import *
from sched import schedule

OPT = dict(stamp=False, mfsum=True, dmabias=1400, spin=1 << 20)

XW = 8320; WQOFF = 4 * XW; STG = 50432
KSZ = 16640; VT = 8448; PS = 33536
MISC = 162560
CSX = MISC
ZERO = MISC + 1024
FLAG = MISC + 1056
LDS_TOTAL = MISC + 1280
SL = 4192; NSL = 6
FV = 4 * PS; STG0 = FV + VT; XN = STG0 + 4 * SL; UU = XN + 2048; MF = XN
WOFF = [0, 4 * SL, PS, 3 * PS, 3 * PS + 4 * SL, STG0]
DA = PS + 4 * SL; GA = 2 * PS; MS = 1040; UA = GA + 16 * MS
assert DA + 16 * MS <= 2 * PS and UA + 16 * MS <= 3 * PS
assert UU + 768 <= MISC and LDS_TOTAL <= 163840
WS_O = 0; WS_ST = 0x1000000; WS_R = 0x1008000; WS_Y = 0x1010000; WS_F = 0x1070000; WS_E = 0x1078000; WS_MF = 0x1079000; WS_CS = 0x10C0000; WS_X = 0x1100000; WS_SIZE4 = 0x1700000; WS_ST2 = 0x1700000; WS_F2 = 0x1720000; WS_MF2 = 0x1740000; WS_SIZE8 = 0x1800000
WS_SIZE = 0x1100000
NPROD = 86
NP = {0: 0, 1: 2, 2: 1, 3: 3, 4: 5, 5: 7, 6: 4, 7: 6}
CSC = 0.08838834764831845 * 1.4426950408889634
LOG2E = 1.4426950408889634
def f32(x): return "0x%08x" % struct.unpack("<I", struct.pack("<f", x))[0]

V_OX, V_OWQ, V_OK, V_OV = "v1", "v2", "v3", "v4"
V_XC, V_WC, V_KC, V_VC = "v5", "v6", "v7", "v8"
V_A0, V_A1, V_A2 = "v9", "v10", "v11"
V_TCH = "v1"; V_TD = "v2"
L = lambda q: 12 + q
NEGM = lambda q: 16 + 4 * q
P = lambda b, q: 32 + 16 * b + 4 * q
S = lambda b, kb, q: 64 + 32 * b + 16 * kb + 4 * q
O = lambda db, q: 128 + 16 * db + 4 * q
QF = lambda q, s: 16 * q + 4 * s
KF = lambda kb, s: 64 + 16 * kb + 4 * s
K1F = lambda kb, s: 192 + 16 * kb + 4 * s
VF = lambda db: 96 + 4 * db
QA = lambda st, db: 64 + 64 * st + 4 * db
QB = lambda st, q: 96 + 64 * st + 4 * q
QC = lambda st, j: 112 + 64 * st + 4 * j
ONES = 12
AP = lambda db: 224 + 2 * db
CS = lambda j: 32 + 4 * j
STQ = lambda q: 48 + 2 * q
BP = lambda q: 56 + 2 * q
v4r = lambda r: f"v[{r}:{r+3}]"
a4r = lambda r: f"a[{r}:{r+3}]"

S_W, S_H, S_QB = "s3", "s26", "s27"
SRD_X, SRD_WQ, SRD_K, SRD_V, SRD_WS = "s[4:7]", "s[8:11]", "s[12:15]", "s[16:19]", "s[20:23]"
SRD_WO = SRD_WQ
S_XG, S_WG, S_XL, S_WL = "s28", "s29", "s30", "s31"
S_KC, S_FILL, S_RD, S_I = "s32", "s33", "s34", "s35"
S_T0, S_T1, S_T2, S_T3 = "s36", "s37", "s38", "s39"
S_XW, S_WW, S_XGW, S_WGW = "s40", "s41", "s42", "s43"
S_KW, S_VW, S_PAIR, S_PREV, S_FK, S_FV = "s44", "s45", "s46", "s47", "s48", "s49"
S_D0, S_D1 = "s50", "s51"
S_QT, S_NT = "s52", "s53"
S_TO = "s54"
S_SP = "s55"
S_TAG = "s35"; S_PASS = "s49"; S_TL = "s47"
S_XB = "s51"
S_HK = "s51"
S_FS = "s24"
S_FO = "s25"
PX, PK, PV_, PWQ, PWO, PWR, PG, PU, PD, POUT, PDBG, PWS = 64, 66, 68, 70, 72, 76, 78, 80, 82, 84, 86, 88
S_DBG = "s[86:87]"

def mf(d, a, b, c, dk="v", ak="a", bk="a"):
    cs = c if isinstance(c, str) else f"{dk}[{c}:{c+3}]"
    return f"    v_mfma_f32_16x16x32_bf16 {dk}[{d}:{d+3}], {ak}[{a}:{a+3}], {bk}[{b}:{b+3}], {cs}"
def srd(r, p, size, add=None):
    if add is None: l = [f"    s_mov_b32 s{r}, s{p}", f"    s_mov_b32 s{r+1}, s{p+1}"]
    else: l = [f"    s_add_u32 s{r}, s{p}, {add}", f"    s_addc_u32 s{r+1}, s{p+1}, 0"]
    return l + [f"    s_mov_b32 s{r+2}, {size}", f"    s_mov_b32 s{r+3}, 0x20000"]
def flat(items):
    o = []
    for it in items:
        if isinstance(it, dict): it = it["lines"]
        if isinstance(it, (list, tuple)): o += flat(it)
        else: o += it.split("\n")
    return o
def dep(lines, r=(), w=(), bias=0, rr=(), ww=()): return dict(lines=lines, r=r, w=w, bias=bias, rr=rr, ww=ww)

def wrap(reg, step, lim):
    return [f"    s_add_u32 {reg}, {reg}, {step}", [f"    s_cmp_ge_u32 {reg}, {lim}", f"    s_cselect_b32 {reg}, 0, {reg}"]]

def stage_dma(tag=()):
    it = [f"    s_xor_b32 {S_WG}, {S_KC}, {S_XB}", f"    s_add_u32 {S_WG}, {S_WG}, {S_D0}", f"    s_and_b32 {S_WG}, {S_WG}, 7",
          f"    s_lshl_b32 {S_XG}, {S_WG}, 7", f"    s_add_u32 {S_XG}, {S_XG}, {S_XGW}",
          f"    s_lshl_b32 {S_WG}, {S_WG}, 19", f"    s_add_u32 {S_WG}, {S_WG}, {S_WGW}",
          f"    s_add_u32 {S_XL}, {S_FILL}, {S_XW}", f"    s_add_u32 {S_WL}, {S_FILL}, {S_WW}",
          f"    s_add_u32 {S_KC}, {S_KC}, 1"] + wrap(S_FILL, STG, 3 * STG)
    for e in range(4):
        it.append(f"    s_add_u32 m0, {S_WL}, {e*1056}")
        it.append(dep(f"    buffer_load_dwordx4 {V_OWQ}, {SRD_WQ}, {S_WG} offen lds", r=tag))
        if e < 3: it.append(f"    s_add_u32 {S_WG}, {S_WG}, 8192")
    for Pp in range(8):
        it.append(f"    s_add_u32 m0, {S_XL}, {NP[Pp]*1040 - (Pp&1)*2048}")
        it.append(dep(f"    buffer_load_dwordx4 {V_OX}, {SRD_X}, {S_XG} offen offset:{(Pp&1)*2048} lds", r=tag))
        if Pp & 1 and Pp < 7: it.append(f"    s_add_u32 {S_XG}, {S_XG}, 4096")
    return it

def q_reads(st, ks, tag=()):
    r = []
    for j in range(2):
        for p in range(2):
            r.append(f"    ds_read_b64_tr_b16 a[{QC(st,j)+2*p}:{QC(st,j)+2*p+1}], {V_A2} offset:{ks*8448 + p*256 + j*32}")
    for q in range(4):
        r.append(f"    ds_read_b128 {a4r(QB(st,q))}, {V_A0} offset:{q*256 + ks*64}")
    for db in range(8):
        for p in range(2):
            r.append(f"    ds_read_b64_tr_b16 a[{QA(st,db)+2*p}:{QA(st,db)+2*p+1}], {V_A1} offset:{ks*8448 + p*256 + db*32}")
    return [dep(x, r=tag) for x in r]
def cs_mfmas(st, first=False):
    return [mf(CS(j), ONES, QC(st, j), "0" if first else CS(j), ak="v") for j in range(2)]
def q_mfmas(st, first=False):
    return [mf(O(db, q), QA(st, db), QB(st, q), "0" if first else O(db, q)) for db in range(8) for q in range(4)]
def q_addr():
    return [f"    v_add_u32 {V_A0}, {S_RD}, {V_XC}", f"    v_add_u32 {V_A1}, {S_RD}, {V_WC}",
            (f"    v_add_u32 {V_A2}, s62, {V_A1}" if OPT.get("csh") else f"    v_lshl_add_u32 {V_A2}, {S_W}, 6, {V_A1}")][:2 if OPT.get("csh") and i > 3 else 3] + wrap(S_RD, STG, 3 * STG)

def kv_dma(skip_v0=False, tag=(), extra=()):
    it = [f"    s_add_u32 {S_PREV}, {S_PAIR}, 8192", f"    s_add_u32 {S_PAIR}, {S_PAIR}, 16384", f"    s_and_b32 {S_PAIR}, {S_PAIR}, 0x1ffff",
          f"    s_add_u32 {S_FK}, {S_FILL}, {S_KW}", f"    s_add_u32 {S_FV}, {S_FILL}, {S_VW}"] + wrap(S_FILL, PS, 4 * PS) + list(extra)
    for e in range(4):
        it.append(f"    s_add_u32 m0, {S_FK}, {e*(2080-256)}")
        it.append(dep(f"    buffer_load_dwordx4 {V_OK}, {SRD_K}, {S_PAIR} offen offset:{e*256} lds", r=tag))
    for tt in range(2):
        if tt == 0 and skip_v0: continue
        for e in range(2):
            it.append(f"    s_add_u32 m0, {S_FV}, {tt*VT + e*(1056-256)}")
            it.append(dep(f"    buffer_load_dwordx4 {V_OV}, {SRD_V}, {S_PREV if tt == 0 else S_PAIR} offen offset:{e*256} lds", r=tag))
    return it
def k_reads(half, kf=KF):
    return [f"    ds_read_b128 {a4r(kf(kb,s))}, {V_A0} offset:{(2*half+kb)*256 + s*64}" for kb in range(2) for s in range(4)]
def v_reads(tt):
    return [f"    ds_read_b64_tr_b16 a[{VF(db)+2*p}:{VF(db)+2*p+1}], {V_A1} offset:{tt*VT + p*512 + db*32}" for db in range(8) for p in range(2)]
def qk(b, czero=False, kf=KF, qs=range(4)):
    m = []
    for q in qs:
        for kb in range(2):
            for s in range(4):
                c = S(b, kb, q) if s else ("0" if czero else NEGM(q))
                m.append(mf(S(b, kb, q), kf(kb, s), QF(q, s), c))
    return m
LS = lambda q: 240 + 4 * q
def pv(b):
    m = [mf(O(db, q), VF(db), P(b, q), O(db, q), bk="v") for db in range(8) for q in range(4)]
    if OPT["mfsum"]: m += [mf(LS(q), ONES, P(b, q), LS(q), dk="a", bk="v") for q in range(4)]
    return m
def sm(b, qs):
    f = []
    for q in qs:
        for kb in range(2):
            r = S(b, kb, q)
            for i in range(4): f.append(f"    v_exp_f32 v{r+i}, v{r+i}")
            if not OPT["mfsum"]:
                for i in range(4): f.append(f"    v_add_f32 v{L(q)}, v{r+i}, v{L(q)}")
            f += [f"    v_cvt_pk_bf16_f32 v{P(b,q)+2*kb}, v{r}, v{r+1}", f"    v_cvt_pk_bf16_f32 v{P(b,q)+2*kb+1}, v{r+2}, v{r+3}"]
    return f
def red32(v, t, op="v_add_f32"):
    return [f"    {op}_dpp {v}, {v}, {v} quad_perm:[1,0,3,2] row_mask:0xf bank_mask:0xf",
            f"    {op}_dpp {v}, {v}, {v} quad_perm:[2,3,0,1] row_mask:0xf bank_mask:0xf",
            f"    {op}_dpp {v}, {v}, {v} row_half_mirror row_mask:0xf bank_mask:0xf",
            f"    {op}_dpp {v}, {v}, {v} row_mirror row_mask:0xf bank_mask:0xf",
            f"    v_mov_b32 {t}, {v}", f"    v_permlane16_swap_b32 {v}, {t}", f"    {op} {v}, {v}, {t}"]
def unpack(dst, src, n):
    o = []
    for j in range(n): o += [f"    v_lshlrev_b32 v{dst+2*j}, 16, v{src+j}", f"    v_and_b32 v{dst+2*j+1}, 0xffff0000, v{src+j}"]
    return o
def pack(dst, src, n): return [f"    v_cvt_pk_bf16_f32 v{dst+j}, v{src+2*j}, v{src+2*j+1}" for j in range(n)]
def bfround(d, s): return [f"    v_cvt_pk_bf16_f32 {d}, {s}, {s}", f"    v_and_b32 {d}, 0xffff0000, {d}"]
def sigmoid(d, s, t): return [f"    v_mul_f32 {t}, {f32(-LOG2E)}, {s}", f"    v_exp_f32 {t}, {t}", f"    v_add_f32 {t}, 1.0, {t}", f"    v_rcp_f32 {d}, {t}"]
def lane(v): return [f"    v_mbcnt_lo_u32_b32 {v}, -1, 0", f"    v_mbcnt_hi_u32_b32 {v}, -1, {v}"]
def poll(lab, voff, vtmp, thr, first=True):
    return [f"    s_mov_b32 {S_SP}, 0", f"L_{lab}:", f"    global_load_dword {vtmp}, {voff}, {S_DBG} sc1", "    s_waitcnt vmcnt(0)",
            f"    v_readfirstlane_b32 {S_T0}, {vtmp}", f"    s_cmp_ge_u32 {S_T0}, {thr}", f"    s_cbranch_scc1 L_{lab}_ok",
            f"    s_sleep {OPT.get('slp', 3)}", f"    s_add_u32 {S_SP}, {S_SP}, 1", f"    s_cmp_lt_u32 {S_SP}, {OPT['spin']}", f"    s_cbranch_scc1 L_{lab}", f"L_{lab}_ok:"]

class VM:
    def __init__(self, init=()): self.q = list(init)
    def add(self, tag, n=1): self.q += [tag] * n
    def peek(self, tags):
        q = list(self.q); n = self.wait(tags); self.q = q; return n
    def wait(self, tags):
        idx = [i for i, x in enumerate(self.q) if x in tags]
        if not idx: return None
        n = sum(1 for x in self.q[idx[-1] + 1:] if not (isinstance(x, str) and x.startswith("~")))
        del self.q[:idx[-1] + 1]
        return n

QSLOT = lambda i: ((i + 1) % 3) * STG
def chunk(i, dst):
    if i < 2 or not OPT.get("xor2"): return [f"    s_add_u32 {dst}, {S_D0}, {i}", f"    s_and_b32 {dst}, {dst}, 7"]
    return [f"    s_xor_b32 {dst}, {S_XB}, {i}", f"    s_add_u32 {dst}, {dst}, {S_D0}", f"    s_and_b32 {dst}, {dst}, 7"]
def wd_pre(kc): return [f"    s_lshl_b32 {S_WG}, {kc}, 19", f"    s_add_u32 {S_WG}, {S_WG}, {S_WGW}"]
def xd_pre(kc): return [f"    s_lshl_b32 {S_XG}, {kc}, 7", f"    s_add_u32 {S_XG}, {S_XG}, {S_XGW}"]
def wd(i, bias=0):
    it = []
    for e in range(4):
        it.append(f"    s_add_u32 m0, {S_WW}, {QSLOT(i) + e*1056}")
        it.append(dep(f"    buffer_load_dwordx4 {V_OWQ}, {SRD_WQ}, {S_WG} offen lds", bias=bias))
        if e < 3: it.append(f"    s_add_u32 {S_WG}, {S_WG}, 8192")
    return it
def xd(i, r=(), bias=0):
    it = []
    for Pp in range(8):
        it.append(f"    s_add_u32 m0, {S_XW}, {QSLOT(i) + NP[Pp]*1040 - (Pp&1)*2048}")
        it.append(dep(f"    buffer_load_dwordx4 {V_OX}, {SRD_X}, {S_XG} offen offset:{(Pp&1)*2048} lds", r=r, bias=bias))
        if Pp & 1 and Pp < 7: it.append(f"    s_add_u32 {S_XG}, {S_XG}, 4096")
    return it
QBS = lambda i, ks, q: (QB(ks, q) if i & 1 else 16 * ks + 4 * q)
def xr(i):
    return [dep(f"    ds_read_b128 {a4r(QBS(i,ks,q))}, {V_A0} offset:{q*256 + ks*64}", r=[f"QB{i}"], w=[f"X{i}{ks}{q}"]) for ks in range(2) for q in range(4)]
def xtags(i): return [f"X{i}{ks}{q}" for ks in range(2) for q in range(4)]
def cr(i, ks):
    return [dep(f"    ds_read_b64_tr_b16 a[{QC(ks,j)+2*p}:{QC(ks,j)+2*p+1}], {V_A2} offset:{ks*8448 + p*256 + j*32}", r=[f"QB{i}"], w=[f"C{i}{ks}{j}{p}"]) for j in range(2) for p in range(2)]
def wr(i, ks):
    return [dep(f"    ds_read_b64_tr_b16 a[{QA(ks,db)+2*p}:{QA(ks,db)+2*p+1}], {V_A1} offset:{ks*8448 + p*256 + db*32}", r=[f"QB{i}"], w=[f"W{i}{ks}{db}{p}"]) for db in range(8) for p in range(2)]
def wtags(i): return [f"C{i}{ks}{j}{p}" for ks in range(2) for j in range(2) for p in range(2)] + [f"H{i}0", f"H{i}1"] + [f"W{i}{ks}{db}{p}" for ks in range(2) for db in range(8) for p in range(2)]
def qm(i, ks): return [mf(O(db, q), QA(ks, db), QBS(i, ks, q), "0" if (i == 0 and ks == 0) else O(db, q)) for db in range(8) for q in range(4)]
def qad(i): return [f"    v_add_u32 {V_A0}, {QSLOT(i)}, {V_XC}", f"    v_add_u32 {V_A1}, {QSLOT(i)}, {V_WC}", (f"    v_add_u32 {V_A2}, s62, {V_A1}" if OPT.get("csh") else f"    v_lshl_add_u32 {V_A2}, {S_W}, 6, {V_A1}")][:2 if OPT.get("csh") and i > 3 else 3]
```

```python
from fk_main8 import *

V_KC2, V_VC2 = "v9", "v10"
V_WO, V_AA = "v5", "v6"
S_WB, S_LB, S_WGO = "s32", "s33", "s41"
S_RHO = "s30"
EX = [8, 9, 10, 11, 12, 13, 16, 17, 14, 18, 19, 15, 0, 1, 2, 3]
BLKS = {}
for t in range(4): BLKS[t] = ("a", 16 * t)
for t in range(8, 16): BLKS[t] = ("a", 128 + 16 * (t - 8))
for t in range(16, 20): BLKS[t] = ("a", 64 + 16 * (t - 16))
def BLK(t): return BLKS[t]
LG = EX[8:]
SLOT = {16: 0, 17: 1}
for i, t in enumerate(LG): SLOT[t] = [2, 3, 4, 5, 0, 1, 2, 3][i]
for t in range(8, 14): SLOT[t] = 5

def wo_dma(t, r=(), bias=0):
    it = [f"    s_xor_b32 {S_WGO}, {S_WB}, {EX.index(t) << 15}"]
    for ee in range(4):
        it.append(f"    s_add_u32 m0, {S_LB}, {WOFF[SLOT[t]] + ee*32}")
        it.append(dep(f"    buffer_load_dwordx4 {V_WO}, {SRD_WO}, {S_WGO} offen offset:{ee*1024} lds", r=r, bias=bias))
    return it
def a_reads(t, r=(), w=None, lo="v4"):
    k, b = BLK(t); off = WOFF[SLOT[t]]
    ad, off = (V_AA, off - 3 * PS) if off >= 3 * PS else (lo, off)
    return [dep(f"    ds_read_b64_tr_b16 {k}[{b+4*nb+2*p}:{b+4*nb+2*p+1}], {ad} offset:{off + p*512 + nb*32}", r=r, w=[f"{w}{nb}{p}"] if w else ()) for nb in range(4) for p in range(2)]
def tags(w, n0=4, n1=2): return [f"{w}{a}{b}" for a in range(n0) for b in range(n1)]

def kvd(pos, skip_v0=False, bias=0):
    it = [f"    s_add_u32 {S_PREV}, {S_PAIR}, 8192", f"    s_add_u32 {S_PAIR}, {S_PAIR}, 16384", f"    s_and_b32 {S_PAIR}, {S_PAIR}, 0x1ffff"]
    for e in range(4):
        it.append(f"    s_add_u32 m0, {S_KW}, {pos*PS + e*(2080-256)}")
        it.append(dep(f"    buffer_load_dwordx4 {V_OK}, {SRD_K}, {S_PAIR} offen offset:{e*256} lds", bias=bias))
    for tt in range(2):
        if tt == 0 and skip_v0: continue
        for e in range(2):
            it.append(f"    s_add_u32 m0, {S_VW}, {pos*PS + tt*VT + e*(1056-256)}")
            it.append(dep(f"    buffer_load_dwordx4 {V_OV}, {SRD_V}, {S_PREV if tt == 0 else S_PAIR} offen offset:{e*256} lds", bias=bias))
    return it
def kr(p, half, kf=KF):
    pos = p % 4; ad = V_KC if pos < 2 else V_KC2
    return [dep(f"    ds_read_b128 {a4r(kf(kb,s))}, {ad} offset:{(pos&1)*PS + (2*half+kb)*256 + s*64}", r=[f"BAR{p}"], w=[f"K{p}{half}{kb}{s}"]) for kb in range(2) for s in range(4)]
def vr(p, tt, vf=VF):
    pos = p % 4; ad = V_VC if pos < 2 else V_VC2
    return [dep(f"    ds_read_b64_tr_b16 a[{vf(db)+2*pp}:{vf(db)+2*pp+1}], {ad} offset:{(pos&1)*PS + tt*VT + pp*512 + db*32}", r=[f"BAR{p}"], w=[f"V{p}{tt}{db}{pp}"]) for db in range(8) for pp in range(2)]
def slot_tags(p):
    return [f"K{p}{h}{kb}{s}" for h in range(2) for kb in range(2) for s in range(4)] + [f"V{p}{tt}{db}{pp}" for tt in range(2) for db in range(8) for pp in range(2)]
def pvz(b, first=False):
    if OPT.get("sb"):
        m = []
        for q in range(4):
            m += [mf(O(db, q), VF(db), P(0, q), "0" if first else O(db, q), bk="v") for db in range(8)] + [mf(LS(q), ONES, P(0, q), "0" if first else LS(q), dk="a", ak="v", bk="v")]
        return m
    m = [mf(O(db, q), VF(db), P(b, q), "0" if first else O(db, q), bk="v") for db in range(8) for q in range(4)]
    m += [mf(LS(q), ONES, P(b, q), "0" if first else LS(q), dk="a", ak="v", bk="v") for q in range(4)]
    return m
def sm2(sb, pb, qs):
    f = []
    for q in qs:
        for kb in range(2):
            r = S(sb, kb, q)
            f += [f"    v_exp_f32 v{r+i}, v{r+i}" for i in range(4)]
            f += [f"    v_cvt_pk_bf16_f32 v{P(pb,q)+2*kb}, v{r}, v{r+1}", f"    v_cvt_pk_bf16_f32 v{P(pb,q)+2*kb+1}, v{r+2}, v{r+3}"]
    return f

def gen_att(name):
    o, e, ST, nst, vm, stampnode, sj, sst, mt, d1rest, n1 = gen(name)
    stamp = OPT["stamp"]
    QBI = OPT.get("qbias", 600)
    R = []
    def units(st, minp, items):
        out = []; cur = []
        for x in items:
            cur.append(dict(x, bias=QBI) if isinstance(x, dict) else x)
            if "buffer_load" in str(x): out.append((st, minp, cur)); cur = []
        return out
    stream = units(1, 0, d1rest)
    for k in range(2, 8):
        uw = units(k, k - 2, chunk(k, S_KC) + wd_pre(S_KC) + wd(k)); ux = units(k, max(0, k - 3), chunk(k, "s34") + xd_pre("s34") + xd(k, r=xtags(k - 3) if k >= 3 else ()))
        stream += (uw + ux) if k == 2 else (ux + uw)
    for i in range(8):
        if i: R += qad(i)
        need = [f"Q{i}"] + (["pl"] if i == 7 else [])
        gate = [v4r(O(OPT.get("qgate", 7), 3))] if i >= 1 and OPT.get("qgate", -1) >= 0 else []
        R += [dep([f"    s_waitcnt vmcnt({vm.wait(need)})", "    s_barrier"], r=(wtags(i - 1) + (xtags(i - 1) if i >= 6 else [])) if i else [], w=[f"QB{i}"], rr=gate)]
        if i in OPT.get("stq", (0, 3, 6)): R += stampnode([])
        if i == 7: break
        CSH = OPT.get("csh")
        if CSH:
            if i <= 3: R += [dep(f"    ds_read_b64_tr_b16 a[{112+2*p}:{113+2*p}], {V_A2} offset:{p*256}", r=[f"QB{i}"], w=[f"H{i}{p}"]) for p in range(2)]
            R += xr(i) + wr(i, 0)
            m_ = qm(i - 1, 1) if i >= 1 else []
            R += m_[:10] + ([mf(CS(0), ONES, 112, "0" if i == 0 else CS(0), ak="v")] if i <= 3 else []) + m_[10:] + wr(i, 1)
        else:
            R += xr(i) + cr(i, 0) + wr(i, 0)
            if i >= 1: R += cs_mfmas(1) + qm(i - 1, 1)
            R += cr(i, 1) + wr(i, 1)
        if i == 0: R += OPT["sa_rest"]
        if i == 1: R += sj
        quota = OPT.get("qq0", 10) if i == 0 else OPT.get("qq", 14)
        while stream and quota > 0:
            k = next((n for n, u in enumerate(stream) if u[1] <= i), None)
            if k is None or k > 8: break
            u = stream.pop(k); R += u[2]; vm.add(f"Q{u[0]}"); quota -= 1
        assert not any(u[0] <= i + 1 for u in stream), (i, [u[0] for u in stream][:4])
        if i == 3 and CSH:
            c = CS(0)
            R += bfround(f"v{c+1}", f"v{c}") + [f"    v_sub_f32 v{c}, v{c}, v{c+1}", f"    v_cvt_pk_bf16_f32 v{c}, v{c+1}, v{c}", f"    v_mov_b32 v{c+1}, {S_TAG}", "    v_lshlrev_b32 v36, 3, v21",
                  dep(["    s_mov_b64 exec, 0xffff", f"    buffer_store_dwordx2 v[{c}:{c+1}], v36, {SRD_WS}, s63 offen sc1", "    s_mov_b64 exec, -1"], bias=1500)]; vm.add("z")
        if i == OPT.get("ssti", 3): R += sst; vm.add("z", 2 if OPT.get("fwarm") else 1)
        if i == 1 and OPT["sa_rest"]: R += OPT["st1"]; vm.add("z")
        if i == 5: R += mt
        if i == OPT.get("kvt", -1):
            R += [f"    s_add_u32 s60, {S_PAIR}, 16384", "    s_and_b32 s60, s60, 0x1ffff", f"    s_and_b32 s61, {S_QB}, 3", "    s_lshl_b32 s61, s61, 13", "    s_add_u32 s60, s60, s61",
                  f"    s_lshl_b32 s61, {S_W}, 11", "    s_add_u32 s60, s60, s61", "    v_lshlrev_b32 v43, 7, v22",
                  f"    buffer_load_dword v117, v43, {SRD_K}, s60 offen", f"    buffer_load_dword v117, v43, {SRD_V}, s60 offen"]; vm.add("t", 2)
        if i == 6:
            R += [f"    s_lshl_b32 {S_FK}, {S_QB}, 14", f"    s_lshl_b32 {S_T1}, {S_W}, 12", f"    s_add_u32 {S_FK}, {S_FK}, {S_T1}",
                  f"    s_add_u32 {S_FK}, {S_FK}, {WS_ST2}", "    v_lshlrev_b32 v18, 3, v22", "    v_lshlrev_b32 v43, 6, v22"]
            R += [f"    buffer_load_dwordx2 v[{STQ(q)}:{STQ(q)+1}], v43, {SRD_WS}, {S_FK} offen offset:{q*1024} sc1" for q in range(4)]; vm.add("pl", 4)
            R += kvd(0, skip_v0=True); vm.add("S0", 6)
        R += ([] if CSH else cs_mfmas(0, i == 0)) + qm(i, 0)
    tchk = [f"    v_xor_b32 v16, v{STQ(0)+1}, v{STQ(1)+1}", f"    v_xor_b32 v17, v{STQ(2)+1}, v{STQ(3)+1}", f"    v_xor_b32 v19, {S_TAG}, v{STQ(0)+1}", f"    v_or3_b32 v16, v16, v17, v19",
            f"    v_xor_b32 v17, {S_TAG}, v{STQ(2)+1}", "    v_or_b32 v16, v16, v17", "    v_cmp_ne_u32 vcc, 0, v16"]
    OPT["tchk"] = tchk
    R += [dep(x, r=["QB7"]) for x in tchk]
    R += [dep(["    s_cmp_lg_u64 vcc, 0", "    s_cbranch_scc1 L_sp1x", "L_sp1_ok:"], r=["VM"], w=["VM", "STOK"], rr=["v43"], ww=["v[16:17]", "v19", "vcc"], bias=2000)]
    if CSH:
        qtags = xtags(7) + wtags(7)
        OPT["csl"] = [f"    buffer_load_dwordx2 v[{96+2*db}:{97+2*db}], v36, {SRD_WS}, s96 offen offset:{db*512} sc1" for db in range(8)]
        R += OPT["csl"]; vm.add("cs", 8)
        R += xr(7) + wr(7, 0) + qm(6, 1) + wr(7, 1)
        R += kvd(1); vm.add("S1", 8)
        R += [dep([f"    s_waitcnt vmcnt({vm.wait(['S0', 'cs'])})", "    s_barrier"], w=["BAR0"], rr=[v4r(O(7, 3))])]
        ck = [f"    v_xor_b32 v{97+2*db}, {S_TAG}, v{97+2*db}" for db in range(8)]
        ck += ["    v_or3_b32 v16, v97, v99, v101", "    v_or3_b32 v17, v103, v105, v107", "    v_or3_b32 v16, v16, v109, v111", "    v_or_b32 v16, v16, v17", "    v_cmp_ne_u32 vcc, 0, v16"]
        OPT["ck"] = ck
        R += [dep(x, r=["BAR0"]) for x in ck]
        R += [dep(["    s_cmp_lg_u64 vcc, 0", "    s_cbranch_scc1 L_csx", "L_cs_ok:"], r=["VM"], w=["VM"], rr=["v36"], ww=["v[16:17]", "v[96:111]", "vcc"], bias=2000)]
        R += kvd(2); vm.add("S2", 8)
        R += [f"    v_accvgpr_write_b32 a190, v40"]
        for q in range(4):
            b = BP(q); t = STQ(q)
            R += [dep(f"    v_and_b32 v{b}, 0xffff, v{t}", r=["STOK"]), f"    v_lshl_or_b32 v{b}, v{b}, 16, v{b}", f"    v_xor_b32 v{b}, 0x80008000, v{b}", f"    v_mov_b32 v{b+1}, 0",
                  dep(f"    v_and_b32 v{t+1}, 0xffff0000, v{t}", r=["STOK"]), f"    v_rcp_f32 v{t+1}, v{t+1}", f"    v_mul_f32 v{t+1}, {f32(CSC)}, v{t+1}"]
    else:
        R += [f"    v_add_u32 v18, {CSX}, v18", f"    v_lshl_add_u32 v19, {S_W}, 8, v18"]
        qtags = xtags(7) + wtags(7)
        m6 = qm(6, 1)
        R += xr(7) + cr(7, 0) + wr(7, 0) + cs_mfmas(1) + cr(7, 1) + m6[:8] + cs_mfmas(0) + m6[8:12] + cs_mfmas(1) + m6[12:] + wr(7, 1)
        for j in range(2):
            c = CS(j)
            R += bfround(f"v{c+1}", f"v{c}") + [f"    v_sub_f32 v{c}, v{c}, v{c+1}", f"    v_cvt_pk_bf16_f32 v{c}, v{c+1}, v{c}", f"    v_mov_b32 v{c+1}, 0",
                  dep(f"    ds_write_b64 v19, v[{c}:{c+1}] offset:{j*128}", w=[f"CW{j}"])]
        if not OPT.get("nort"): R += [f"    global_load_dword {V_TD}, v59, s[98:99]"]; vm.add("t")
        R += kvd(1); vm.add("S1", 8)
        R += [dep([f"    s_waitcnt vmcnt({vm.wait(['S0'])})", "    s_barrier"], r=["CW0", "CW1"], w=["BAR0"])]
        if 0 in OPT.get("stb", ()): R += stampnode([])
        R += kvd(2); vm.add("S2", 8)
        R += [f"    v_accvgpr_write_b32 a190, v40"]
        R += [dep(f"    ds_read_b64 a[{AP(db)}:{AP(db)+1}], v18 offset:{db*128}", r=["BAR0"]) for db in range(8)]
        R += ["    v_cmp_gt_u32 vcc, 16, v21"]
        for q in range(4):
            b = BP(q)
            t = STQ(q)
            R += [dep(f"    v_and_b32 v{b}, 0xffff, v{t}", r=["STOK"]), f"    v_lshl_or_b32 v{b}, v{b}, 16, v{b}", f"    v_xor_b32 v{b}, 0x80008000, v{b}", f"    v_cndmask_b32 v{b}, 0, v{b}, vcc", f"    v_mov_b32 v{b+1}, 0",
                  dep(f"    v_and_b32 v{t+1}, 0xffff0000, v{t}", r=["STOK"]), f"    v_rcp_f32 v{t+1}, v{t+1}", f"    v_mul_f32 v{t+1}, {f32(CSC)}, v{t+1}"]
    R += [f"    v_add_u32 {V_KC2}, {2*PS}, {V_KC}", f"    v_add_u32 {V_VC2}, {2*PS}, {V_VC}",
          f"    v_and_b32 {V_A2}, 7, v21", f"    v_lshrrev_b32 {V_WO}, 3, v21", f"    v_lshlrev_b32 {V_WO}, 12, {V_WO}", f"    v_lshl_add_u32 {V_WO}, {V_A2}, 4, {V_WO}",
          f"    s_mul_i32 {S_LB}, {S_W}, {SL}", f"    v_mul_u32_u24 {V_AA}, 1056, v27", f"    v_lshl_add_u32 {V_AA}, v23, 7, {V_AA}", f"    v_lshl_add_u32 {V_AA}, v28, 3, {V_AA}",
          f"    s_add_u32 {S_T2}, {S_LB}, {3*PS}", f"    v_add_u32 {V_AA}, {S_T2}, {V_AA}",
          f"    v_and_b32 {V_TCH}, 31, v21", f"    v_lshlrev_b32 {V_TCH}, 7, {V_TCH}"]
    R += srd(8, PWO, "0x400000")
    R += [f"    buffer_load_dword {V_TD}, {V_TCH}, {SRD_WO}, {S_TO} offen"]; vm.add("t")
    R += kr(0, 0, K1F)
    apr = lambda db: f"v[{96+2*db}:{97+2*db}]" if CSH else f"a[{AP(db)}:{AP(db)+1}]"
    def corr(q): return [f"    v_mfma_f32_16x16x16_bf16 {v4r(O(db,q))}, {apr(db)}, v[{BP(q)}:{BP(q)+1}], {v4r(O(db,q))}" for db in range(8)]
    def main(q): return [mf(O(db, q), QA(st, db), QB(st, q), O(db, q)) for st in range(2) for db in range(8)]
    def E(q):
        f = []
        for s in range(4):
            for db in (2 * s, 2 * s + 1):
                r = O(db, q)
                if OPT.get("pkE"): f += [f"    v_pk_mul_f32 v[{r+i}:{r+i+1}], v[{r+i}:{r+i+1}], v[{STQ(q)}:{STQ(q)+1}] op_sel:[0,1] op_sel_hi:[1,1]" for i in (0, 2)]
                else: f += [f"    v_mul_f32 v{r+i}, v{r+i}, v{STQ(q)+1}" for i in range(4)]
                f += [f"    v_cvt_pk_bf16_f32 v{r}, v{r}, v{r+1}", f"    v_cvt_pk_bf16_f32 v{r+1}, v{r+2}, v{r+3}"]
            a, b = O(2 * s, q), O(2 * s + 1, q)
            f += [f"    v_permlane16_swap_b32 v{a}, v{b}", f"    v_permlane16_swap_b32 v{a+1}, v{b+1}"]
            f += [f"    v_accvgpr_write_b32 a{QF(q,s)}, v{a}", f"    v_accvgpr_write_b32 a{QF(q,s)+1}, v{a+1}",
                  f"    v_accvgpr_write_b32 a{QF(q,s)+2}, v{b}", f"    v_accvgpr_write_b32 a{QF(q,s)+3}, v{b+1}"]
        return f
    def maxchain(q):
        a = S(0, 0, q); b = S(0, 1, q); n = NEGM(q)
        f = [f"    v_max3_f32 v{n}, v{a}, v{a+1}, v{a+2}", f"    v_max3_f32 v{n+1}, v{a+3}, v{b}, v{b+1}",
             f"    v_max3_f32 v{n}, v{n}, v{b+2}, v{b+3}", f"    v_max3_f32 v{n}, v{n}, v{n+1}, v{44+q}",
             f"    v_mov_b32 v{n+1}, v{n}", f"    v_permlane16_swap_b32 v{n}, v{n+1}", f"    v_max_f32 v{n}, v{n}, v{n+1}",
             f"    v_mov_b32 v{n+1}, v{n}", f"    v_permlane32_swap_b32 v{n}, v{n+1}", f"    v_max_f32 v{n+1}, v{n}, v{n+1}",
             f"    v_sub_f32 v{n}, 0, v{n+1}", f"    v_sub_f32 v{n+2}, 0, v{n+1}", f"    v_sub_f32 v{n+3}, 0, v{n+1}", f"    v_sub_f32 v{n+1}, 0, v{n+1}"]
        f += [f"    v_add_f32 v{r+i}, v{n}, v{r+i}" for r in (a, b) for i in range(4)]
        return f
    X0 = lambda q: qk(0, True, kf=K1F, qs=[q]); X1 = lambda q: qk(1, qs=[q])
    R += main(0) + corr(0) + E(0) + main(1) + corr(1) + E(1) + main(2) + corr(2) + X0(0) + maxchain(0) + E(2) + main(3) + corr(3)
    R += kr(0, 1) + vr(0, 1)
    R += X0(1) + maxchain(1) + E(3) + X1(0) + sm(0, [0]) + X0(2) + maxchain(2) + X1(1) + sm(0, [1]) + X0(3) + maxchain(3) + X1(2) + sm(0, [2]) + X1(3) + sm(0, [3])
    R += [f"    s_lshl_b32 {S_WB}, {S_W}, 19", f"    s_lshl_b32 {S_T0}, {S_NT}, 7", f"    s_add_u32 {S_WB}, {S_WB}, {S_T0}",
          f"    s_and_b32 {S_T0}, {S_QT}, 1", f"    s_lshl_b32 {S_T0}, {S_T0}, 21", f"    s_add_u32 {S_WB}, {S_WB}, {S_T0}",
          f"    s_and_b32 {S_RHO}, {S_NT}, {OPT.get('rhom', 3)}", f"    s_lshl_b32 {S_T0}, {S_RHO}, 15", f"    s_add_u32 {S_WB}, {S_WB}, {S_T0}"]
    B = OPT.get("dmabias", 1400)
    hv = {}
    for p in range(1, 8):
        n0 = 0
        rt = slot_tags(p - 1) + (qtags if p == 1 else [])
        need = [f"S{p}", "V15"][:2 if p == 7 else 1] + ([f"G{6+p}"] if 2 <= p <= 6 else [])
        if p in OPT.get("stp", (3,)): R += stampnode([v4r(S(0 if OPT.get("sb") else 1, 1, 3))])
        R += [dep([f"    s_waitcnt vmcnt({vm.wait(need)})", "    s_barrier"], r=rt, w=[f"BAR{p}"])]
        if p in OPT.get("stb", ()): R += stampnode([])
        D = []
        if p == 1:
            D += wo_dma(8, bias=B); vm.add("G8", 4)
        if 2 <= p <= 6:
            D += [dict(x, bias=2 * B) for x in a_reads(6 + p, r=[f"BAR{p}"], w=f"A{p}")]
            D += wo_dma(7 + p, r=tags(f"A{p}"), bias=B); vm.add(f"G{7+p}", 4)
        if 1 <= p <= 5:
            D += kvd((p + 2) % 4, bias=B); vm.add(f"S{p+2}", 8)
        if p == 5:
            D += [f"    s_add_u32 {S_PREV}, {S_PAIR}, 8192"]
            for ee in range(2):
                D += [f"    s_add_u32 m0, {S_VW}, {FV - KSZ + ee*(1056-256)}", dep(f"    buffer_load_dwordx4 {V_OV}, {SRD_V}, {S_PREV} offen offset:{ee*256} lds", bias=B)]
            vm.add("V15", 2)
        if p == 6:
            D += wo_dma(16, bias=B) + wo_dma(17, bias=B); vm.add("G16", 4); vm.add("G17", 4)
            D += lane(V_OK) + [f"    v_lshrrev_b32 {V_OV}, 1, {V_OK}", f"    v_mul_u32_u24 {V_OV}, 2752, {V_OV}", f"    v_and_b32 v11, 1, {V_OK}", f"    v_lshl_add_u32 {V_OV}, v11, 4, {V_OV}",
                  f"    v_lshlrev_b32 {V_OK}, 4, {V_OK}", f"    s_mov_b32 s56, s{PD}", f"    s_mov_b32 s57, s{PD+1}", "    s_mov_b32 s59, 0x20000",
                  [f"    s_cmp_lt_u32 {S_FS}, {NPROD}", f"    s_cselect_b32 s58, {1376*1024}, 0"], f"    s_min_u32 {S_T3}, {S_FS}, {NPROD-1}",
                  f"    s_lshl_b32 {S_T0}, {S_T3}, 14", f"    s_lshl_b32 {S_T1}, {S_W}, 12", f"    s_add_u32 {S_T0}, {S_T0}, {S_T1}", f"    s_mul_i32 {S_T2}, {S_W}, {4*MS}"]
            for i in range(4):
                D += [f"    s_add_u32 m0, {S_T2}, {DA + i*(MS-1024)}", dep(f"    buffer_load_dwordx4 {V_OK}, s[56:59], {S_T0} offen offset:{i*1024} lds", bias=B)]
            vm.add("M", 4)
        if p == 7:
            D += [[f"    s_cmp_lt_u32 {S_W}, 2", f"    s_cselect_b32 s56, s{PG}, s{PU}"], [f"    s_cmp_lt_u32 {S_W}, 2", f"    s_cselect_b32 s57, s{PG+1}, s{PU+1}"],
                  f"    s_and_b32 {S_T0}, {S_W}, 1", f"    s_mul_i32 {S_T0}, {S_T0}, {8*32*2752}", f"    s_lshl_b32 {S_T1}, {S_T3}, 5", f"    s_add_u32 {S_T0}, {S_T0}, {S_T1}", f"    s_mul_i32 {S_T2}, {S_W}, {8*MS}"]
            for i in range(8):
                D += [f"    s_add_u32 m0, {S_T2}, {GA + i*MS}", dep(f"    buffer_load_dwordx4 {V_OV}, s[56:59], {S_T0} offen lds", bias=B), f"    s_add_u32 {S_T0}, {S_T0}, {32*2752}"]
            vm.add("M", 8)
            D += [dep(f"    v_bfe_u32 v11, {V_OK}, 4, 3", r=["BAR7"]), "    v_lshlrev_b32 v11, 2, v11", f"    global_load_dword {V_TD}, v11, {S_DBG} offset:128 sc1"]; vm.add("ky")
        TP = OPT.get("tp4", (1, 3, 5))
        if p in TP:
            D += [f"    s_xor_b32 {S_TO}, {S_TO}, {(1, 3, 1)[list(TP).index(p)] << 17}", f"    buffer_load_dword {V_TD}, {V_TCH}, {SRD_WO}, {S_TO} offen"]; vm.add("t")
        if p == 4 and not OPT.get("nort"):
            D += [dep(f"    v_accvgpr_read_b32 {V_TCH}, a189", r=["BAR4"]), f"    global_load_dword {V_TD}, {V_TCH}, s[98:99]"]; vm.add("t")
        if p == 4:
            D += [dep(f"    v_accvgpr_read_b32 v11, a190", r=["BAR4"]), f"    buffer_load_dword {V_TD}, v11, s[56:59], 0 offen"]; vm.add("t")
        if p in (2, 3):
            hv[p] = sum(1 for x in flat(D) if "buffer_" in x or "global_" in x)
            D += [dep([f"    s_cmp_eq_u32 s2, 0", f"    s_cbranch_scc1 L_hk{p}", f"L_hk{p}b:"], r=["VM"], w=["VM"], ww=["a[192:239]", "v11"])]
        R += D
        if p == 7 and OPT.get("skew"):
            R += pvz(0) + sm(1, range(4))
        elif OPT.get("sb"):
            R += pvz(0, first=(p == 1)) + kr(p, 0) + sm2(1 if p == 1 else 0, 0, range(4)) + qk(0) + vr(p, 0) + pvz(0) + kr(p, 1) + sm2(0, 0, range(4)) + qk(0) + vr(p, 1)
        else:
            R += pvz(0, first=(p == 1)) + kr(p, 0) + sm(1, range(4)) + qk(0) + vr(p, 0) + pvz(1) + kr(p, 1) + sm(0, range(4)) + qk(1) + vr(p, 1)
    OPT['hv3'] = hv[3]
    return o, e, ST, nst, R, vm, stampnode
```

```python
from fk import *
import fk

def gen(name):
    stamp = OPT["stamp"]
    o = []
    def e(x): o.extend(flat([x]))
    nst = [0]
    CPF = "s_nop 0" if OPT.get("nocpf") else "global_load_dword v57, v29, s[56:57]"
    ROT = {0: f"s_mov_b32 {S_D0}, {S_T0}", 1: f"s_mul_i32 {S_D0}, {S_T3}, 3\n    s_add_u32 {S_D0}, {S_D0}, {S_T0}", 2: f"s_mov_b32 {S_D0}, 0"}[OPT.get("rot", 0)]
    MAP1 = f"""s_mov_b32 {S_QT}, {S_H}
    s_mov_b32 {S_NT}, {S_QB}
    s_and_b32 {S_T3}, {S_T0}, 1
    s_lshl_b32 {S_T3}, {S_T3}, 9
    s_add_u32 {S_TO}, {S_TO}, {S_T3}""" if OPT.get("map1") else ""
    def ST():
        if stamp:
            e(["    s_memtime s[90:91]", "    s_memrealtime s[100:101]", "    s_waitcnt lgkmcnt(0)", f"    v_writelane_b32 v0, s90, {nst[0]}", f"    v_writelane_b32 v0, s100, {32+nst[0]}"]); nst[0] += 1
    e(f".globl {name}\n.p2align 8\n.type {name},@function\n{name}:")
    e(f"""    s_getpc_b64 s[98:99]
L_pc:
    v_lshrrev_b32 v29, {2 if OPT.get("c64") else 3}, v0
    v_lshlrev_b32 v29, {6 if OPT.get("c64") else 7}, v29
    global_load_dword v57, v29, s[98:99]
    s_load_dwordx16 s[64:79], s[0:1], 0
    s_load_dwordx8 s[80:87], s[0:1], 64
    s_load_dwordx2 s[88:89], s[0:1], 96
    s_cmp_ge_u32 s2, 256
    s_cbranch_scc1 L_end
    s_mov_b32 {S_PASS}, 0
L_restart:
    s_lshr_b32 {S_T1}, s2, 3                   ; j
    v_lshrrev_b32 v59, {3 if OPT.get("c64") else 4}, v0
    v_lshlrev_b32 v59, {6 if OPT.get("c64") else 7}, v59
    v_lshl_add_u32 v59, {S_T1}, 11, v59
    v_min_u32 v59, L_code_end-L_pc-4, v59
    global_load_dword v58, v59, s[98:99]""")
    if stamp: e("    s_memtime s[92:93]\n    s_memrealtime s[94:95]")
    sd0 = flat(chunk(0, S_KC) + wd_pre(S_KC) + xd_pre(S_KC)); sd1 = flat(wd(0) + xd(0))
    e(f"""    v_lshrrev_b32 v20, 6, v0
    v_and_b32 v21, 63, v0                      ; lane
    v_readfirstlane_b32 {S_W}, v20
    s_and_b32 {S_T0}, s2, 7                    ; xcd
    s_lshr_b32 {S_T2}, {S_T0}, 1
    s_lshl_b32 {S_H}, {S_T2}, 3
    s_and_b32 {S_T3}, {S_T1}, 7
    s_add_u32 {S_H}, {S_H}, {S_T3}             ; h = 8*(x>>1) + (j&7)
    s_and_b32 {S_T3}, {S_T0}, 1
    s_lshl_b32 {S_QB}, {S_T3}, 2
    s_lshr_b32 {S_TO}, {S_T1}, 3
    s_add_u32 {S_QB}, {S_QB}, {S_TO}           ; qb = 4*(x&1) + (j>>3)
    {ROT}
    s_add_u32 {S_XB}, {S_H}, {S_QB}
    s_and_b32 {S_XB}, {S_XB}, 1
    v_and_b32 v22, 15, v21                     ; i16
    v_lshrrev_b32 v23, 4, v21                  ; g
    v_lshlrev_b32 {V_OX}, 14, v23
    v_bfe_u32 v29, v21, 3, 1
    v_lshl_add_u32 {V_OX}, v29, 10, {V_OX}
    v_and_b32 v29, 7, v21
    v_lshl_add_u32 {V_OX}, v29, 4, {V_OX}
    v_lshlrev_b32 {V_OWQ}, 15, v23
    v_lshl_add_u32 {V_OWQ}, v22, 4, {V_OWQ}
    s_mul_i32 {S_XW}, {S_W}, {XW}
    s_mul_i32 {S_WW}, {S_W}, {4*1056}
    s_add_u32 {S_WW}, {S_WW}, {WQOFF}
    s_lshl_b32 {S_XGW}, {S_W}, 16
    s_lshl_b32 {S_WGW}, {S_W}, 17
    s_lshl_b32 {S_T0}, {S_H}, 3
    s_lshl_b32 {S_T1}, {S_W}, 1
    s_add_u32 {S_T3}, {S_T0}, {S_T1}
    s_lshl_b32 {S_T0}, {S_T3}, 10
    v_lshlrev_b32 v30, 5, v21
    v_and_b32 v31, 0x3ff, v30
    s_lshl_b32 {S_T1}, {S_QB}, 18
    s_lshl_b32 {S_T2}, {S_H}, 8
    s_mov_b32 s6, 0x40000
    s_mov_b32 s7, 0x20000
    s_mov_b32 s10, {511*8192+256}
    s_mov_b32 s11, 0x20000""")
    e(sd0)
    e("    s_waitcnt lgkmcnt(0)")
    if stamp: e("    s_memtime s[62:63]")
    e(srd(4, PX, "0x40000", S_T1)[:2]); e(srd(8, PWQ, "0", S_T2)[:2])
    e(f"""    buffer_load_dwordx4 v[96:99], v30, {SRD_X}, {S_T0} offen
    buffer_load_dwordx4 v[100:103], v30, {SRD_X}, {S_T0} offen offset:16""")
    e(sd1)
    e(f"""    s_mov_b32 {S_SP}, {WS_E}
    s_load_dword {S_TL}, s[{PWS}:{PWS+1}], {S_SP}
    global_load_dwordx4 v[104:107], v31, s[{PWR}:{PWR+1}]
    global_load_dwordx4 v[108:111], v31, s[{PWR}:{PWR+1}] offset:16""")
    if stamp: e("    s_memtime s[96:97]")
    e(f"""    s_and_b32 {S_T0}, s2, 7
    s_lshr_b32 {S_T1}, s2, 3
    s_and_b32 {S_T2}, {S_T0}, 1
    s_lshl_b32 {S_PAIR}, {S_T2}, 16
    s_sub_u32 {S_PAIR}, {S_PAIR}, 16384
    s_and_b32 {S_PAIR}, {S_PAIR}, 0x1ffff
    s_lshr_b32 {S_NT}, {S_T1}, 2               ; nt = j>>2
    s_and_b32 {S_QT}, {S_T1}, 3
    s_lshl_b32 {S_QT}, {S_QT}, 1
    s_add_u32 {S_QT}, {S_QT}, {S_T2}
    s_and_b32 {S_FS}, {S_H}, 24
    s_add_u32 {S_QT}, {S_QT}, {S_FS}
    s_lshl_b32 {S_TO}, {S_TO}, 19
    s_lshl_b32 {S_T2}, {S_T2}, 21
    s_add_u32 {S_TO}, {S_TO}, {S_T2}
    s_and_b32 {S_T2}, {S_T1}, 7
    s_lshl_b32 {S_T2}, {S_T2}, 14
    s_add_u32 {S_TO}, {S_TO}, {S_T2}
    s_and_b32 {S_T2}, {S_T1}, 3
    s_lshl_b32 {S_FS}, {S_T0}, 2
    s_add_u32 {S_FS}, {S_FS}, {S_T2}
    s_lshr_b32 {S_T2}, {S_T1}, 2
    s_lshl_b32 {S_T2}, {S_T2}, 5
    s_add_u32 {S_FS}, {S_FS}, {S_T2}           ; fs = 32*(j>>2) + 4x + (j&3)
    v_accvgpr_write_b32 a189, v59""")
    e(f"""    s_lshl_b32 {S_T1}, {S_H}, 19
    s_add_u32 {S_T1}, {S_T1}, {1536*256}""")
    e(srd(12, PK, "0x20000", S_T1)); e(srd(16, PV_, "0x20000", S_T1)); e(srd(20, PWS, WS_SIZE8))
    e(f"""    v_and_b32 v24, 1, v23
    v_lshrrev_b32 v25, 1, v23
    v_lshl_add_u32 v26, v24, 1, v25            ; sigma(g)
    v_bfe_u32 v27, v21, 2, 2                   ; r'
    v_and_b32 v28, 3, v21                      ; c'
    v_lshlrev_b32 {V_OK}, 12, v23
    v_lshl_add_u32 {V_OK}, v22, 4, {V_OK}
    v_lshl_add_u32 {V_OK}, v20, 10, {V_OK}
    v_lshlrev_b32 {V_OV}, 11, v23
    v_lshl_add_u32 {V_OV}, v22, 4, {V_OV}
    v_lshl_add_u32 {V_OV}, v20, 9, {V_OV}
    s_mov_b32 {S_T1}, 0x64753120
    v_lshrrev_b32 v29, 1, v22
    v_lshlrev_b32 v29, 2, v29
    v_bfe_u32 v29, {S_T1}, v29, 4
    v_mul_u32_u24 {V_XC}, 1040, v29
    v_and_b32 v29, 1, v22
    v_lshl_add_u32 {V_XC}, v29, 7, {V_XC}
    v_lshl_add_u32 {V_XC}, v26, 4, {V_XC}
    v_add_u32 {V_XC}, {S_XW}, {V_XC}
    v_lshl_add_u32 v29, v24, 2, v27
    v_mul_u32_u24 v29, 1056, v29
    v_lshl_add_u32 v29, v28, 3, v29
    v_lshl_add_u32 {V_WC}, v25, 9, v29
    v_add_u32 {V_WC}, {WQOFF}, {V_WC}
    v_lshl_add_u32 {V_VC}, v25, 8, v29
    v_add_u32 {V_VC}, {KSZ}, {V_VC}
    s_mov_b32 {S_T1}, 0x8910
    v_lshrrev_b32 v29, 2, v22
    v_lshlrev_b32 v29, 2, v29
    v_bfe_u32 v29, {S_T1}, v29, 4
    v_lshl_add_u32 v29, v28, 1, v29
    v_mul_u32_u24 {V_KC}, 1040, v29
    v_lshl_add_u32 {V_KC}, v26, 4, {V_KC}
    s_lshl_b32 {S_T2}, {S_W}, 2
    s_lshr_b32 {S_T1}, {S_T1}, {S_T2}
    s_and_b32 {S_T1}, {S_T1}, 15
    s_mul_i32 {S_KW}, {S_T1}, 1040
    s_mul_i32 {S_VW}, {S_W}, {2*1056}
    s_add_u32 {S_VW}, {S_VW}, {KSZ}
    s_lshl_b32 {S_T1}, {S_W}, 12
    s_add_u32 {S_TO}, {S_TO}, {S_T1}
    v_mov_b32 v16, 0
    v_mov_b32 v17, 0
    v_mov_b32 v18, 0
    v_mov_b32 v19, 0
    v_mov_b32 v29, {FLAG}
    ds_write_b32 v29, v16
    v_lshlrev_b32 v42, 4, v22
    v_lshl_add_u32 v42, {S_W}, 8, v42
    v_add_u32 v42, {MF}, v42
    s_cmp_lg_u32 {S_PASS}, 0
    s_cbranch_scc1 L_nomf
    v_mov_b32 v44, 0xff800000
    v_mov_b32 v45, 0xff800000
    v_mov_b32 v46, 0xff800000
    v_mov_b32 v47, 0xff800000
    s_branch L_mf
L_nomf:
    ds_read_b128 v[44:47], v42
L_mf:
    v_mov_b32 v12, 0x3f803f80
    v_mov_b32 v13, 0x3f803f80
    v_mov_b32 v14, 0x3f803f80
    v_mov_b32 v15, 0x3f803f80""")
    if stamp:
        e("    s_waitcnt lgkmcnt(0)\n    v_mov_b32 v0, 0\n    v_writelane_b32 v0, s92, 0\n    v_writelane_b32 v0, s94, 30\n    v_writelane_b32 v0, s62, 1\n    v_writelane_b32 v0, s96, 2\n    v_writelane_b32 v0, s94, 33\n    v_writelane_b32 v0, s94, 34"); nst[0] = 3
    def stampnode(regs, r=()):
        if not stamp: return []
        k = nst[0]; nst[0] += 1
        return [dep(["    s_memtime s[90:91]", "    s_memrealtime s[100:101]", "    s_waitcnt lgkmcnt(0)", f"    v_writelane_b32 v0, s90, {k}", f"    v_writelane_b32 v0, s100, {32+k}"], rr=regs, r=["VM"] + list(r), w=["VM"], bias=3000)]
    ST()
    sa = ["    s_waitcnt vmcnt(14)"] + unpack(64, 96, 8)
    sa += ["    v_add_f32 v48, v64, v65", "    v_add_f32 v49, v66, v67"]
    for j in range(4, 16, 2): sa += [f"    v_add_f32 v48, v{64+j}, v48", f"    v_add_f32 v49, v{65+j}, v49"]
    sa += ["    v_add_f32 v48, v48, v49"] + red32("v48", "v49") + [f"    v_mul_f32 v48, {f32(1/512)}, v48"]
    sa += [f"    v_sub_f32 v{80+j}, v{64+j}, v48" for j in range(16)]
    sa += ["    v_mul_f32 v50, v80, v80", "    v_mul_f32 v51, v81, v81"]
    for j in range(2, 16, 2): sa += [f"    v_fmac_f32 v50, v{80+j}, v{80+j}", f"    v_fmac_f32 v51, v{81+j}, v{81+j}"]
    sa += ["    v_add_f32 v50, v50, v51"] + red32("v50", "v51")
    sa += [f"    v_mul_f32 v50, {f32(1/512)}, v50", "    v_cvt_pk_bf16_f32 v51, v48, v50", "    v_lshlrev_b32 v112, 16, v51",
           "    v_and_b32 v50, 0xffff0000, v51", f"    v_add_f32 v50, {f32(1e-5)}, v50"] + bfround("v50", "v50") + ["    v_sqrt_f32 v50, v50"]
    sa += ["    v_cvt_pk_bf16_f32 v118, v112, v50", "    v_and_b32 v50, 0xffff0000, v118", "    s_waitcnt lgkmcnt(0)", f"    s_add_u32 {S_TL}, {S_TL}, 0x9e3779b9\n    s_nop 0\n    s_cmp_eq_u32 {S_PASS}, 0\n    s_cselect_b32 {S_TAG}, {S_TL}, {S_TAG}", "    v_rcp_f32 v113, v50", f"    v_mov_b32 v119, {S_TAG}"]
    e(f"""    s_lshl_b32 {S_T0}, {S_QB}, 8
    s_add_u32 {S_T0}, {S_T0}, {S_T3}
    v_lshrrev_b32 v115, 5, v21
    v_add_u32 v115, {S_T0}, v115               ; row
    v_lshlrev_b32 v115, 6, v115
    v_and_b32 v56, 7, v21
    v_lshl_add_u32 v56, v56, 3, v115
    s_mov_b32 {S_T0}, {WS_ST2}""")
    if OPT.get("csh"):
        e([f"    s_and_b32 s62, {S_QB}, 3", "    s_lshl_b32 s62, s62, 1", f"    s_and_b32 {S_T1}, {S_W}, 1", f"    s_add_u32 s62, s62, {S_T1}",
           "    s_lshl_b32 s63, s62, 9", "    s_lshl_b32 s62, s62, 5", f"    s_lshr_b32 {S_T1}, {S_W}, 1", f"    s_mul_i32 {S_T2}, {S_T1}, 8448", f"    s_add_u32 s62, s62, {S_T2}",
           f"    s_lshl_b32 {S_T1}, {S_T1}, 7", f"    s_add_u32 s63, s63, {S_T1}", f"    s_lshr_b32 {S_T1}, {S_QB}, 2", f"    s_lshl_b32 {S_T1}, {S_T1}, 8", f"    s_add_u32 s63, s63, {S_T1}",
           f"    s_lshl_b32 s96, {S_H}, 12", f"    s_add_u32 s96, s96, {WS_CS}", "    s_add_u32 s63, s63, s96"])
    e(qad(0))
    NS1 = OPT.get("ns1", 6)
    d1 = chunk(1, S_KC) + wd_pre(S_KC) + xd_pre(S_KC) + wd(1) + xd(1)
    cut = [i for i, x in enumerate(d1) if "buffer_load" in str(x)][NS1 - 1] + 1 if NS1 else 0
    dm = flat(d1[:cut]); d1rest = d1[cut:]
    st1 = ["    s_mov_b32 exec_lo, 0xff", "    s_mov_b32 exec_hi, 0xff", f"    buffer_store_dwordx2 v[118:119], v56, {SRD_WS}, {S_T0} offen sc1", "    s_mov_b64 exec, -1"]
    NSA = OPT.get("nsa", len(sa))
    tagl = [x for x in sa if "s_cselect" in x or "lgkmcnt" in x]
    sa = [x for x in sa if x not in tagl]
    pre_sa, OPT["sa_rest"] = sa[:NSA], sa[NSA:]
    if OPT["sa_rest"]: pre_sa = pre_sa + tagl
    else: pre_sa = pre_sa[:-2] + tagl + pre_sa[-2:]
    step = len(pre_sa) / (len(dm) + 1); k = 0
    for i, ln in enumerate(pre_sa):
        e(ln)
        while dm and (k + 1) * step <= i + 1:
            e(dm.pop(0)); k += 1
    e(dm)
    if not OPT["sa_rest"]:
        e(st1); vm = VM(["Q0"] * 12 + ["Q1"] * 2 + ["Q1"] * NS1 + ["Q1"])
    else:
        OPT["st1"] = [st1]; vm = VM(["Q0"] * 12 + ["Q1"] * 2 + ["Q1"] * NS1)
    ST()
    FOC = f"""    s_lshl_b32 {S_FO}, {S_QB}, 14
    s_lshl_b32 {S_T2}, {S_W}, 12
    s_add_u32 {S_FO}, {S_FO}, {S_T2}
    s_lshl_b32 {S_T2}, {S_H}, 7
    s_add_u32 {S_FO}, {S_FO}, {S_T2}""" if OPT.get("flf") else f"""    s_lshl_b32 {S_FO}, {S_QB}, 11
    s_lshl_b32 {S_T2}, {S_W}, 9
    s_add_u32 {S_FO}, {S_FO}, {S_T2}
    s_lshr_b32 {S_T2}, {S_H}, 3
    s_lshl_b32 {S_T2}, {S_T2}, 7
    s_add_u32 {S_FO}, {S_FO}, {S_T2}
    s_and_b32 {S_T2}, {S_H}, 7
    s_lshl_b32 {S_T2}, {S_T2}, 2
    s_add_u32 {S_FO}, {S_FO}, {S_T2}"""
    sj = [f"    v_sub_f32 v{64+j}, v{64+j}, v112" for j in range(16)]
    sj += pack(80, 64, 8) + unpack(64, 80, 8) + [f"    v_mul_f32 v{64+j}, v{64+j}, v113" for j in range(16)] + pack(80, 64, 8)
    sj += ["    v_mov_b32 v114, 0", dep([f"    v_dot2c_f32_bf16 v114, v{80+j}, v{104+j}" for j in range(8)] + ["    s_nop 3"], r=["QB1"])] + red32("v114", "v116") + bfround("v114", "v114")
    sj += flat([f"""    v_ashrrev_i32 v116, 31, v114
    v_or_b32 v116, 0x80000000, v116
    v_xor_b32 v114, v114, v116
    s_mov_b32 {S_T2}, 0xffff
    v_bfi_b32 v114, {S_T2}, v119, v114
    s_mov_b32 {S_T1}, {WS_ST2+56}
{FOC}
    s_add_u32 {S_FO}, {S_FO}, {WS_F2 if OPT.get('flf') else WS_F}"""])
    sst = [["    s_mov_b32 exec_lo, 1", "    s_mov_b32 exec_hi, 1",
            f"    buffer_store_dword v114, v115, {SRD_WS}, {S_T1} offen sc1"] + ([f"    buffer_store_dword v117, v120, {SRD_WS}, {S_FO} offen sc1"] if OPT.get("fwarm") else []) + ["    s_mov_b64 exec, -1"]]
    if OPT.get("fwarm"): sj += ["    v_not_b32 v117, v119", "    v_lshlrev_b32 v120, 9, v21"]
    mt = [f"    s_lshr_b32 {S_T0}, s2, 3", f"    s_lshl_b32 {S_T0}, {S_T0}, 2", f"    s_add_u32 {S_T0}, {S_T0}, {S_W}",
           [f"    s_cmp_lt_u32 {S_T0}, 48", f"    s_cselect_b32 s56, s{PG}, s{PU}"], [f"    s_cmp_lt_u32 {S_T0}, 48", f"    s_cselect_b32 s57, s{PG+1}, s{PU+1}"], [f"    s_cmp_lt_u32 {S_T0}, 48", f"    s_cselect_b32 {S_T1}, 0, 48"],
           f"    s_sub_u32 {S_T1}, {S_T0}, {S_T1}",
           f"    s_and_b32 {S_T2}, {S_T1}, 15", f"    s_mul_i32 {S_T2}, {S_T2}, {32*2752}", f"    s_lshr_b32 {S_T1}, {S_T1}, 4", f"    s_lshl_b32 {S_T1}, {S_T1}, 10",
           f"    s_add_u32 {S_T2}, {S_T2}, {S_T1}", f"    s_and_b32 {S_T1}, s2, 7", f"    s_lshl_b32 {S_D0}, {S_T1}, 7", f"    s_add_u32 {S_T2}, {S_T2}, {S_D0}",
           f"    v_lshrrev_b32 v40, 1, v21", f"    v_mul_u32_u24 v40, 2752, v40", f"    v_and_b32 v41, 1, v21", f"    v_mul_u32_u24 v41, 124, v41", f"    v_add_u32 v40, v40, v41", "    v_lshlrev_b32 v41, 7, v21",
           f"    s_sub_u32 {S_D0}, {S_T0}, 96", f"    s_lshr_b32 {S_T3}, {S_D0}, 3", f"    s_lshl_b32 {S_T3}, {S_T3}, 19", f"    s_and_b32 {S_D0}, {S_D0}, 7", f"    s_lshl_b32 {S_D0}, {S_D0}, 13",
           f"    s_add_u32 {S_D0}, {S_D0}, {S_T3}", f"    s_lshl_b32 {S_T1}, {S_T1}, 16", f"    s_add_u32 {S_D0}, {S_D0}, {S_T1}", "    s_mov_b32 s59, 0x20000", f"    s_mov_b32 s58, {1376*1024}",
           [f"    s_cmp_ge_u32 {S_T0}, 96", f"    s_cselect_b32 s56, s{PD}, s56"], [f"    s_cmp_ge_u32 {S_T0}, 96", f"    s_cselect_b32 s57, s{PD+1}, s57"], [f"    s_cmp_ge_u32 {S_T0}, 96", f"    s_cselect_b32 {S_T2}, {S_D0}, {S_T2}"],
           [f"    s_cmp_ge_u32 {S_T0}, 96", "    s_cselect_b64 s[60:61], -1, 0"], "    v_cndmask_b32 v40, v40, v41, s[60:61]", f"    v_add_u32 v40, {S_T2}, v40",
           f"    s_lshl_b32 {S_HK}, s2, 2", f"    s_add_u32 {S_HK}, {S_HK}, {S_W}"]
    return o, e, ST, nst, vm, stampnode, sj, sst, mt, d1rest, 12 - NS1
```

```python
from asmlib import *

class Node:
    __slots__ = ("lines", "ins", "r", "w", "cost", "kind", "succ", "pred", "npred", "prio", "ready", "idx", "lds", "bias", "start", "lc", "vc", "crit")

def mknode(item, idx):
    extra_r = set(); extra_w = set(); bias = 0
    if isinstance(item, dict):
        extra_r = {("p", x) for x in item.get("r", ())}; extra_w = {("p", x) for x in item.get("w", ())}
        for t in item.get("rr", ()): extra_r |= regs(t)
        for t in item.get("ww", ()): extra_w |= regs(t)
        bias = item.get("bias", 0); item = item["lines"]
    lines = [item] if isinstance(item, str) else list(item)
    n = Node(); n.lines = lines; n.ins = [Ins(l) for l in lines]; n.idx = idx; n.bias = bias
    n.r = set(extra_r); n.w = set(extra_w)
    for i in n.ins:
        n.r |= (i.r - n.w) if False else i.r
        n.w |= i.w
    cl = [i.cls for i in n.ins if i.cls != "none"]
    n.kind = "mfma" if cl == ["mfma"] else ("ds" if "ds" in cl else ("vmem" if "vmem" in cl else cl[-1]))
    n.lds = sum(1 for c in cl if c == "ds")
    n.cost = 8 if n.kind == "mfma" else sum(cost_of(l) * (1 if Ins(l).mn != "s_nop" else Ins(l).states()) for l in lines if Ins(l).cls != "none")
    if any(c == "vmem" for c in cl) or any(i.mn == "s_waitcnt" and "vmcnt" in i.text for i in n.ins):
        n.r.add(("p", "VM")); n.w.add(("p", "VM"))
    if any(i.mn == "s_barrier" for i in n.ins):
        n.r.add(("p", "VM")); n.w.add(("p", "VM"))
    ex = regs("exec")
    n.r -= ex; n.w -= ex
    n.lc = 0; n.vc = 0
    for i in n.ins:
        if i.cls == "ds":
            n.lc += LDSC["w"] if i.mn.startswith("ds_write") else (LDSC[128] if "b128" in i.mn else LDSC[64])
        if i.cls == "vmem":
            n.vc += VMC if "x4" in i.mn else VMC // 2
    n.succ = []; n.pred = []
    return n

LDS_LAT = 128
LDSC = {128: 20, 64: 10, 'w': 32}
VMC = 76
def latency(p, c, kind):
    if kind == "raw":
        if p.kind == "mfma":
            if c.kind == "mfma" and p.ins[0].w == c.ins[0].c and not (p.w & (c.ins[0].a | c.ins[0].b)): return 16
            return 44
        if p.kind == "ds": return LDS_LAT
        k = max(need(p.ins[-1], x) for x in c.ins)
        return p.cost + 4 * k
    if kind == "war":
        if p.kind == "mfma" and c.kind == "valu" and (p.ins[0].c & c.w): return 8 + 12
        return p.cost
    if kind == "waw":
        if p.kind == "mfma": return 44 if c.kind != "mfma" else 16
        if p.kind == "ds": return LDS_LAT
        return p.cost
    return p.cost

AGG = dict(W=160, f=0.85)
def schedule(items, keep_mfma_order=True, verbose=None, tail_wait=False):
    nodes = [mknode(it, i) for i, it in enumerate(items)]
    lastw = {}; readers = {}
    prev_m = None
    for n in nodes:
        deps = {}
        for r in n.r:
            if r in lastw: deps[lastw[r].idx] = max(deps.get(lastw[r].idx, 0), latency(lastw[r], n, "raw") if r[0] != "p" or lastw[r].kind == "ds" else (max(lastw[r].cost, lastw[r].vc) if (r[1] == "VM" and n.vc) else lastw[r].cost))
        for r in n.w:
            if r in lastw: deps[lastw[r].idx] = max(deps.get(lastw[r].idx, 0), latency(lastw[r], n, "waw") if r[0] != "p" else lastw[r].cost)
            for q in readers.get(r, ()):
                if q is not n: deps[q.idx] = max(deps.get(q.idx, 0), latency(q, n, "war"))
        if keep_mfma_order and n.kind == "mfma":
            if prev_m is not None: deps[prev_m.idx] = max(deps.get(prev_m.idx, 0), 16)
            prev_m = n
        for i, lat in deps.items():
            nodes[i].succ.append((n, lat)); n.pred.append((nodes[i], lat))
        for r in n.r: readers.setdefault(r, []).append(n)
        for r in n.w: lastw[r] = n; readers[r] = []
    for n in reversed(nodes):
        n.prio = n.cost + n.bias + max([lat + s.prio - 0 for s, lat in n.succ], default=(LDS_LAT if (n.kind == "ds" and tail_wait) else 0))
    for n in reversed(nodes):
        n.crit = n.cost + max([lat + s_.crit for s_, lat in n.succ], default=(LDS_LAT if (n.kind == "ds" and tail_wait) else 0))
    for n in nodes: n.npred = len(n.pred); n.ready = 0
    avail = [n for n in nodes if n.npred == 0]
    t = 0; pipe = 0; order = []; ldsf = 0
    mlist = [n for n in nodes if n.kind == "mfma"]
    import bisect
    mcrit = [-n.crit for n in mlist]
    nm = len(mlist)
    demand = [0] * (nm + 2)
    dl = {}
    for n in nodes:
        if n.kind != "mfma":
            d = min(nm, bisect.bisect_left(mcrit, -n.crit)); dl[n.idx] = d; demand[d] += n.cost
    mdone = 0
    def overloaded():
        acc = sum(demand[:mdone + 1])
        for k in range(mdone + 1, min(nm, mdone + AGG["W"]) + 1):
            acc += demand[k]
            if acc > AGG["f"] * 8 * (k - mdone) + 8: return True
        return False
    while avail:
        m = [n for n in avail if n.kind == "mfma"]
        m.sort(key=lambda n: (-n.prio, n.idx))
        best = None
        mstart = max(m[0].ready, pipe) if m else None
        if m and mstart <= t:
            best = m[0]
        else:
            c = [n for n in avail if n.kind != "mfma" and n.ready <= t and (not n.lc or ldsf <= t + 8)]
            if c:
                room = (mstart - t) if m else 1 << 30
                fit = [n for n in c if n.cost <= room]
                pool = fit if fit else None
                if pool is None:
                    top = max(c, key=lambda n: (n.crit, -n.idx))
                    if top.crit > m[0].crit + 0: pool = [top]
                    else:
                        big = [n for n in c if n.cost > 8 and room >= 8]
                        if big: pool = big
                        elif room >= 4 and AGG["W"] and overloaded(): pool = [n for n in c if n.cost <= 8]
                if pool: best = max(pool, key=lambda n: (n.prio, -n.idx))
        if best is not None and best.kind == "mfma":
            c = [n for n in avail if n.kind != "mfma" and n.ready <= t and n.crit > best.crit + 8 and (not n.lc or ldsf <= t + 8)]
            if c: best = max(c, key=lambda n: (n.crit, -n.idx))
        if best is None:
            nxt = [max(n.ready, pipe) if n.kind == "mfma" else n.ready for n in avail]
            t = max(t + 4, min(x for x in nxt)) if min(nxt) > t else t + 4
            continue
        avail.remove(best); best.start = t; order.append(best)
        if best.kind == "mfma": pipe = t + 16; mdone += 1
        else: demand[dl[best.idx]] -= best.cost
        if best.lc: ldsf = max(ldsf, t) + best.lc
        for s, lat in best.succ:
            s.ready = max(s.ready, t + lat); s.npred -= 1
            if s.npred == 0: avail.append(s)
        t += best.cost
    assert len(order) == len(nodes)
    pos = {n.idx: i for i, n in enumerate(order)}
    for n in nodes:
        for p_, _ in n.pred:
            if p_.kind == "vmem" and n.kind != "vmem":
                rg = {x for x in p_.w if x[0] in "va"} & (n.r | n.w)
                if rg:
                    nw = sum(1 for m_ in order[pos[p_.idx] + 1:pos[n.idx] + 1] if any(i_.mn == "s_waitcnt" and "vmcnt" in i_.text for i_ in m_.ins))
                    if verbose and nw <= 1: print(f"    async: {p_.lines[-1].strip()[:60]} -> {n.lines[0].strip()[:50]}  vm-waits between: {nw}")
    out = []; pend = []
    for n in order:
        need_done = -1
        preds = {p.idx for p, _ in n.pred if p.kind == "ds" and ((p.w & (n.r | n.w)))}
        for k, pn in enumerate(pend):
            if pn.idx in preds: need_done = k
        if need_done >= 0:
            while need_done + 1 < len(pend) and pend[need_done + 1].start + LDS_LAT <= n.start: need_done += 1
            left = len(pend) - 1 - need_done
            out.append(f"    s_waitcnt lgkmcnt({min(left, 15)})")
            pend = pend[need_done + 1:] if left <= 15 else pend[-15:]
        if any(i.mn == "s_waitcnt" and "lgkmcnt(0)" in i.text for i in n.ins): pend = []
        out += n.lines
        pend += [n] * n.lds
    if verbose: print("    marks:", [(n.start, sum(1 for m_ in order[:i] if m_.kind == "mfma")) for i, n in enumerate(order) if any(x.mn in ("s_barrier", "s_memtime") for x in n.ins)])
    if verbose: print(f"  sched[{verbose}]: model cycles {t}, nodes {len(nodes)}, mfma {sum(1 for n in nodes if n.kind=='mfma')}")
    return out
```

```python
from asmlib import *

class Node:
    __slots__ = ("lines", "ins", "r", "w", "cost", "kind", "succ", "pred", "npred", "prio", "ready", "idx", "lds", "bias", "start", "lc", "vc", "crit")

def mknode(item, idx):
    extra_r = set(); extra_w = set(); bias = 0
    if isinstance(item, dict):
        extra_r = {("p", x) for x in item.get("r", ())}; extra_w = {("p", x) for x in item.get("w", ())}
        for t in item.get("rr", ()): extra_r |= regs(t)
        for t in item.get("ww", ()): extra_w |= regs(t)
        bias = item.get("bias", 0); item = item["lines"]
    lines = [item] if isinstance(item, str) else list(item)
    n = Node(); n.lines = lines; n.ins = [Ins(l) for l in lines]; n.idx = idx; n.bias = bias
    n.r = set(extra_r); n.w = set(extra_w)
    for i in n.ins:
        n.r |= (i.r - n.w) if False else i.r
        n.w |= i.w
    cl = [i.cls for i in n.ins if i.cls != "none"]
    n.kind = "mfma" if cl == ["mfma"] else ("ds" if "ds" in cl else ("vmem" if "vmem" in cl else cl[-1]))
    n.lds = sum(1 for c in cl if c == "ds")
    n.cost = 8 if n.kind == "mfma" else sum(cost_of(l) * (1 if Ins(l).mn != "s_nop" else Ins(l).states()) for l in lines if Ins(l).cls != "none")
    if any(c == "vmem" for c in cl) or any(i.mn == "s_waitcnt" and "vmcnt" in i.text for i in n.ins):
        n.r.add(("p", "VM")); n.w.add(("p", "VM"))
    if any(i.mn == "s_barrier" for i in n.ins):
        n.r.add(("p", "VM")); n.w.add(("p", "VM"))
    ex = regs("exec")
    n.r -= ex; n.w -= ex
    n.lc = 0; n.vc = 0
    for i in n.ins:
        if i.cls == "ds":
            n.lc += LDSC["w"] if i.mn.startswith("ds_write") else (LDSC[128] if "b128" in i.mn else LDSC[64])
        if i.cls == "vmem":
            n.vc += VMC if "x4" in i.mn else VMC // 2
    n.succ = []; n.pred = []
    return n

LDS_LAT = 128
LDSC = {128: 20, 64: 10, 'w': 32}
VMC = 76
def latency(p, c, kind):
    if kind == "raw":
        if p.kind == "mfma":
            if c.kind == "mfma" and p.ins[0].w == c.ins[0].c and not (p.w & (c.ins[0].a | c.ins[0].b)): return 16
            return 44
        if p.kind == "ds": return LDS_LAT
        k = max(need(p.ins[-1], x) for x in c.ins)
        return p.cost + 4 * k
    if kind == "war":
        if p.kind == "mfma" and c.kind == "valu" and (p.ins[0].c & c.w): return 8 + 12
        return p.cost
    if kind == "waw":
        if p.kind == "mfma": return 44 if c.kind != "mfma" else 16
        if p.kind == "ds": return LDS_LAT
        return p.cost
    return p.cost

def schedule(items, keep_mfma_order=True, verbose=None, tail_wait=False):
    nodes = [mknode(it, i) for i, it in enumerate(items)]
    lastw = {}; readers = {}
    prev_m = None
    for n in nodes:
        deps = {}
        for r in n.r:
            if r in lastw: deps[lastw[r].idx] = max(deps.get(lastw[r].idx, 0), latency(lastw[r], n, "raw") if r[0] != "p" or lastw[r].kind == "ds" else (max(lastw[r].cost, lastw[r].vc) if (r[1] == "VM" and n.vc) else lastw[r].cost))
        for r in n.w:
            if r in lastw: deps[lastw[r].idx] = max(deps.get(lastw[r].idx, 0), latency(lastw[r], n, "waw") if r[0] != "p" else lastw[r].cost)
            for q in readers.get(r, ()):
                if q is not n: deps[q.idx] = max(deps.get(q.idx, 0), latency(q, n, "war"))
        if keep_mfma_order and n.kind == "mfma":
            if prev_m is not None: deps[prev_m.idx] = max(deps.get(prev_m.idx, 0), 16)
            prev_m = n
        for i, lat in deps.items():
            nodes[i].succ.append((n, lat)); n.pred.append((nodes[i], lat))
        for r in n.r: readers.setdefault(r, []).append(n)
        for r in n.w: lastw[r] = n; readers[r] = []
    for n in reversed(nodes):
        n.prio = n.cost + n.bias + max([lat + s.prio - 0 for s, lat in n.succ], default=(LDS_LAT if (n.kind == "ds" and tail_wait) else 0))
    for n in reversed(nodes):
        n.crit = n.cost + max([lat + s_.crit for s_, lat in n.succ], default=(LDS_LAT if (n.kind == "ds" and tail_wait) else 0))
    for n in nodes: n.npred = len(n.pred); n.ready = 0
    avail = [n for n in nodes if n.npred == 0]
    t = 0; pipe = 0; order = []; ldsf = 0
    while avail:
        m = [n for n in avail if n.kind == "mfma"]
        m.sort(key=lambda n: (-n.prio, n.idx))
        best = None
        mstart = max(m[0].ready, pipe) if m else None
        if m and mstart <= t:
            best = m[0]
        else:
            c = [n for n in avail if n.kind != "mfma" and n.ready <= t and (not n.lc or ldsf <= t + 8)]
            if c:
                room = (mstart - t) if m else 1 << 30
                fit = [n for n in c if n.cost <= room]
                pool = fit if fit else None
                if pool is None:
                    top = max(c, key=lambda n: (n.crit, -n.idx))
                    if top.crit > m[0].crit + 0: pool = [top]
                    else:
                        big = [n for n in c if n.cost > 8 and room >= 8]
                        if big: pool = big
                if pool: best = max(pool, key=lambda n: (n.prio, -n.idx))
        if best is not None and best.kind == "mfma":
            c = [n for n in avail if n.kind != "mfma" and n.ready <= t and n.crit > best.crit + 8 and (not n.lc or ldsf <= t + 8)]
            if c: best = max(c, key=lambda n: (n.crit, -n.idx))
        if best is None:
            nxt = [max(n.ready, pipe) if n.kind == "mfma" else n.ready for n in avail]
            t = max(t + 4, min(x for x in nxt)) if min(nxt) > t else t + 4
            continue
        avail.remove(best); best.start = t; order.append(best)
        if best.kind == "mfma": pipe = t + 16
        if best.lc: ldsf = max(ldsf, t) + best.lc
        for s, lat in best.succ:
            s.ready = max(s.ready, t + lat); s.npred -= 1
            if s.npred == 0: avail.append(s)
        t += best.cost
    assert len(order) == len(nodes)
    pos = {n.idx: i for i, n in enumerate(order)}
    for n in nodes:
        for p_, _ in n.pred:
            if p_.kind == "vmem" and n.kind != "vmem":
                rg = {x for x in p_.w if x[0] in "va"} & (n.r | n.w)
                if rg:
                    nw = sum(1 for m_ in order[pos[p_.idx] + 1:pos[n.idx] + 1] if any(i_.mn == "s_waitcnt" and "vmcnt" in i_.text for i_ in m_.ins))
                    if verbose: print(f"    async: {p_.lines[-1].strip()[:60]} -> {n.lines[0].strip()[:50]}  vm-waits between: {nw}")
    out = []; pend = []
    for n in order:
        need_done = -1
        preds = {p.idx for p, _ in n.pred if p.kind == "ds" and ((p.w & (n.r | n.w)))}
        for k, pn in enumerate(pend):
            if pn.idx in preds: need_done = k
        if need_done >= 0:
            while need_done + 1 < len(pend) and pend[need_done + 1].start + LDS_LAT <= n.start: need_done += 1
            left = len(pend) - 1 - need_done
            out.append(f"    s_waitcnt lgkmcnt({min(left, 15)})")
            pend = pend[need_done + 1:] if left <= 15 else pend[-15:]
        if any(i.mn == "s_waitcnt" and "lgkmcnt(0)" in i.text for i in n.ins): pend = []
        out += n.lines
        pend += [n] * n.lds
    if verbose: print(f"  sched[{verbose}]: model cycles {t}, nodes {len(nodes)}, mfma {sum(1 for n in nodes if n.kind=='mfma')}")
    return out
```

```python
from asmlib import *

class Node:
    __slots__ = ("lines", "ins", "r", "w", "cost", "kind", "succ", "pred", "npred", "prio", "ready", "idx", "lds", "bias", "start", "lc", "vc", "crit")

def mknode(item, idx):
    extra_r = set(); extra_w = set(); bias = 0
    if isinstance(item, dict):
        extra_r = {("p", x) for x in item.get("r", ())}; extra_w = {("p", x) for x in item.get("w", ())}
        for t in item.get("rr", ()): extra_r |= regs(t)
        for t in item.get("ww", ()): extra_w |= regs(t)
        bias = item.get("bias", 0); item = item["lines"]
    lines = [item] if isinstance(item, str) else list(item)
    n = Node(); n.lines = lines; n.ins = [Ins(l) for l in lines]; n.idx = idx; n.bias = bias
    n.r = set(extra_r); n.w = set(extra_w)
    for i in n.ins:
        n.r |= (i.r - n.w) if False else i.r
        n.w |= i.w
    cl = [i.cls for i in n.ins if i.cls != "none"]
    n.kind = "mfma" if cl == ["mfma"] else ("ds" if "ds" in cl else ("vmem" if "vmem" in cl else cl[-1]))
    n.lds = sum(1 for c in cl if c == "ds")
    n.cost = 8 if n.kind == "mfma" else sum(cost_of(l) * (1 if Ins(l).mn != "s_nop" else Ins(l).states()) for l in lines if Ins(l).cls != "none")
    if any(c == "vmem" for c in cl) or any(i.mn == "s_waitcnt" and "vmcnt" in i.text for i in n.ins):
        n.r.add(("p", "VM")); n.w.add(("p", "VM"))
    if any(i.mn == "s_barrier" for i in n.ins):
        n.r.add(("p", "VM")); n.w.add(("p", "VM"))
    ex = regs("exec")
    n.r -= ex; n.w -= ex
    n.lc = 0; n.vc = 0
    for i in n.ins:
        if i.cls == "ds":
            n.lc += LDSC["w"] if i.mn.startswith("ds_write") else (LDSC[128] if "b128" in i.mn else LDSC[64])
        if i.cls == "vmem":
            n.vc += VMC if "x4" in i.mn else VMC // 2
    n.succ = []; n.pred = []
    return n

LDS_LAT = 128
LDSC = {128: 20, 64: 10, 'w': 32}
VMC = 76
def latency(p, c, kind):
    if kind == "raw":
        if p.kind == "mfma":
            if c.kind == "mfma" and p.ins[0].w == c.ins[0].c and not (p.w & (c.ins[0].a | c.ins[0].b)): return 16
            return 44
        if p.kind == "ds": return LDS_LAT
        k = max(need(p.ins[-1], x) for x in c.ins)
        return p.cost + 4 * k
    if kind == "war":
        if p.kind == "mfma" and c.kind == "valu" and (p.ins[0].c & c.w): return 8 + 12
        return p.cost
    if kind == "waw":
        if p.kind == "mfma": return 44 if c.kind != "mfma" else 16
        if p.kind == "ds": return LDS_LAT
        return p.cost
    return p.cost

def schedule(items, keep_mfma_order=True, verbose=None, tail_wait=False):
    nodes = [mknode(it, i) for i, it in enumerate(items)]
    lastw = {}; readers = {}
    prev_m = None
    for n in nodes:
        deps = {}
        for r in n.r:
            if r in lastw: deps[lastw[r].idx] = max(deps.get(lastw[r].idx, 0), latency(lastw[r], n, "raw") if r[0] != "p" or lastw[r].kind == "ds" else (max(lastw[r].cost, lastw[r].vc) if (r[1] == "VM" and n.vc) else lastw[r].cost))
        for r in n.w:
            if r in lastw: deps[lastw[r].idx] = max(deps.get(lastw[r].idx, 0), latency(lastw[r], n, "waw") if r[0] != "p" else lastw[r].cost)
            for q in readers.get(r, ()):
                if q is not n: deps[q.idx] = max(deps.get(q.idx, 0), latency(q, n, "war"))
        if keep_mfma_order and n.kind == "mfma":
            if prev_m is not None: deps[prev_m.idx] = max(deps.get(prev_m.idx, 0), 16)
            prev_m = n
        for i, lat in deps.items():
            nodes[i].succ.append((n, lat)); n.pred.append((nodes[i], lat))
        for r in n.r: readers.setdefault(r, []).append(n)
        for r in n.w: lastw[r] = n; readers[r] = []
    for n in reversed(nodes):
        n.prio = n.cost + n.bias + max([lat + s.prio - 0 for s, lat in n.succ], default=(LDS_LAT if (n.kind == "ds" and tail_wait) else 0))
    for n in reversed(nodes):
        n.crit = n.cost + max([lat + s_.crit for s_, lat in n.succ], default=(LDS_LAT if (n.kind == "ds" and tail_wait) else 0))
    for n in nodes: n.npred = len(n.pred); n.ready = 0
    avail = [n for n in nodes if n.npred == 0]
    t = 0; pipe = 0; order = []; ldsf = 0
    while avail:
        m = [n for n in avail if n.kind == "mfma"]
        m.sort(key=lambda n: (-n.prio, n.idx))
        best = None
        mstart = max(m[0].ready, pipe) if m else None
        if m and mstart <= t:
            best = m[0]
        else:
            c = [n for n in avail if n.kind != "mfma" and n.ready <= t and (not n.lc or ldsf <= t + 8)]
            if c:
                room = (mstart - t) if m else 1 << 30
                fit = [n for n in c if n.cost <= room]
                pool = fit if fit else None
                if pool is None:
                    top = max(c, key=lambda n: (n.crit, -n.idx))
                    if top.crit > m[0].crit + 0: pool = [top]
                    else:
                        big = [n for n in c if n.cost > 8 and room >= 8]
                        if big: pool = big
                if pool: best = max(pool, key=lambda n: (n.prio, -n.idx))
        if best is not None and best.kind == "mfma":
            c = [n for n in avail if n.kind != "mfma" and n.ready <= t and n.crit > best.crit + 8 and (not n.lc or ldsf <= t + 8)]
            if c: best = max(c, key=lambda n: (n.crit, -n.idx))
        if best is None:
            nxt = [max(n.ready, pipe) if n.kind == "mfma" else n.ready for n in avail]
            t = max(t + 4, min(x for x in nxt)) if min(nxt) > t else t + 4
            continue
        avail.remove(best); best.start = t; order.append(best)
        if best.kind == "mfma": pipe = t + 16
        if best.lc: ldsf = max(ldsf, t) + best.lc
        for s, lat in best.succ:
            s.ready = max(s.ready, t + lat); s.npred -= 1
            if s.npred == 0: avail.append(s)
        t += best.cost
    assert len(order) == len(nodes)
    pos = {n.idx: i for i, n in enumerate(order)}
    for n in nodes:
        for p_, _ in n.pred:
            if p_.kind == "vmem" and n.kind != "vmem":
                rg = {x for x in p_.w if x[0] in "va"} & (n.r | n.w)
                if rg:
                    nw = sum(1 for m_ in order[pos[p_.idx] + 1:pos[n.idx] + 1] if any(i_.mn == "s_waitcnt" and "vmcnt" in i_.text for i_ in m_.ins))
                    if verbose: print(f"    async: {p_.lines[-1].strip()[:60]} -> {n.lines[0].strip()[:50]}  vm-waits between: {nw}")
    out = []; pend = []
    for n in order:
        need_done = -1
        preds = {p.idx for p, _ in n.pred if p.kind == "ds" and ((p.w & (n.r | n.w)))}
        for k, pn in enumerate(pend):
            if pn.idx in preds: need_done = k
        if need_done >= 0:
            while need_done + 1 < len(pend) and pend[need_done + 1].start + LDS_LAT <= n.start: need_done += 1
            left = len(pend) - 1 - need_done
            out.append(f"    s_waitcnt lgkmcnt({min(left, 15)})")
            pend = pend[need_done + 1:] if left <= 15 else pend[-15:]
        if any(i.mn == "s_waitcnt" and "lgkmcnt(0)" in i.text for i in n.ins): pend = []
        out += n.lines
        pend += [n] * n.lds
    if verbose: print("    marks:", [(n.start, sum(1 for m_ in order[:i] if m_.kind == "mfma")) for i, n in enumerate(order) if any(x.mn in ("s_barrier", "s_memtime") for x in n.ins)])
    if verbose: print(f"  sched[{verbose}]: model cycles {t}, nodes {len(nodes)}, mfma {sum(1 for n in nodes if n.kind=='mfma')}")
    return out
```

```python
from fk_att9 import *

ACC = lambda nb, q: 64 + 16 * q + 4 * nb
OB_ = lambda t: ("v", 128 + 16 * (t & 3))
ACX = lambda t, nb, q: (240 + 4 * nb if (t < 16 and q == 0) else ACC(nb, q))
PDW = FV + 2064
V_LN = "v2"; V_L0 = "v3"
S_OB = "s31"; S_OG = "s40"
S_K0, S_K1, S_I0, S_I1 = "s42", "s43", "s44", "s45"
S_XT = "s46"; S_OWN = "s34"
SRD_Y, SRD_OUT = "s[16:19]", "s[12:15]"
THR = 2.0 ** 40
def o_load(t, q):
    k, r = OB_(t)
    return f"    buffer_load_dwordx4 {k}[{r+4*q}:{r+4*q+3}], v{7+q}, {SRD_WS}, {S_OG} offen {OPT.get('ofl', 'sc1')}"
def o_off(t): return f"    s_xor_b32 {S_OG}, {S_OB}, {((t & 15) << 10) | ((1 - (t >> 4)) << 19)}"

def merge8(v):
    t = ["s60", "s61", "s62", "s63", "s90", "s91", "s96", "s97"]
    o = [f"    v_readlane_b32 {t[i]}, {v}, {i}" for i in range(8)] + ["    s_nop 0"]
    o += [f"    s_min_u32 {S_T0}, {t[1]}, {t[3]}", f"    s_min_u32 {S_T1}, {t[5]}, {t[7]}", f"    s_min_u32 {S_T0}, {S_T0}, {S_T1}"]
    def mg(a, b, c, d, ha, hb): return [f"    s_max_u32 {b}, {b}, {d}", f"    s_min_u32 {d}, {a}, {c}", f"    s_max_u32 {ha}, {a}, {c}", f"    s_max_u32 {hb}, {b}, {d}"]
    o += mg(t[0], t[1], t[2], t[3], t[0], t[1]) + mg(t[4], t[5], t[6], t[7], t[4], t[5]) + mg(t[0], t[1], t[4], t[5], S_K0, S_K1)
    return o

def gen_full(name):
    o, e, ST, nst, R, vmx, stampnode = gen_att(name)
    stamp = OPT["stamp"]
    if OPT.get("skew"):
        R += [[f"    s_cmp_lt_u32 {S_FS}, {NPROD}", f"    s_cselect_b32 {S_D0}, 1, 0"], [f"    s_cmp_eq_u32 {S_W}, 2", f"    s_cselect_b32 {S_D0}, {S_D0}, 0"]]
        R += [f"    s_lshl_b32 {S_OG}, {S_QB}, 21", f"    s_lshl_b32 {S_OB}, {S_W}, 19", f"    s_add_u32 {S_OG}, {S_OG}, {S_OB}",
              f"    s_lshl_b32 {S_OB}, {S_H}, 12", f"    s_add_u32 {S_OG}, {S_OG}, {S_OB}"]
        buf = [0]
        def nb_():
            b_ = 64 + 32 * buf[0]; buf[0] ^= 1; return b_
        def Xq(half, qs):
            b_ = nb_(); kf = lambda kb, s_: b_ + 16 * kb + 4 * s_
            return kr(7, half, kf) + qk(half, kf=kf, qs=qs)
        def Yrd(j):
            b_ = nb_(); vf = lambda db: b_ + 4 * db
            rd = vr(7, j - 13, vf) if j < 15 else [dep(f"    ds_read_b64_tr_b16 a[{vf(db)+2*p}:{vf(db)+2*p+1}], {V_VC2} offset:{FV - KSZ - 2*PS + p*512 + db*32}", r=["BAR7"]) for db in range(8) for p in range(2)]
            return rd, vf
        def Ym(vf, pb, qs): return [mf(O(db, q), vf(db), P(pb, q), O(db, q), bk="v") for db in range(8) for q in qs]
        def Ls(pb, qs): return [mf(LS(q), ONES, P(pb, q), LS(q), dk="a", ak="v", bk="v") for q in qs]
        def norm(q):
            f = []
            for u in range(4):
                a, b = O(2 * u, q), O(2 * u + 1, q)
                for r in (a, b): f += [f"    v_mul_f32 v{r+i}, v{r+i}, v{20+q}" for i in range(4)]
                f += [f"    v_cvt_pk_bf16_f32 v{a}, v{a}, v{a+1}", f"    v_cvt_pk_bf16_f32 v{a+1}, v{a+2}, v{a+3}",
                      f"    v_cvt_pk_bf16_f32 v{a+2}, v{b}, v{b+1}", f"    v_cvt_pk_bf16_f32 v{a+3}, v{b+2}, v{b+3}",
                      dep(f"    buffer_store_dwordx4 {v4r(a)}, {V_L0}, {SRD_WS}, {S_OG} offen offset:{u*1024} sc1", bias=OPT.get("stb_", 600) if q < 2 else 0)]
                vmx.add("st")
            if q < 3: f += [f"    s_add_u32 {S_OG}, {S_OG}, 131072"]
            return f
        for qs in ((0, 1), (2, 3)):
            R += Xq(0, qs) + sm(0, qs)
            rd, vf = Yrd(13); R += rd + Ym(vf, 1, qs) + Ls(1, qs)
            R += Xq(1, qs)
            if qs[0] == 2: R += stampnode([v4r(S(1, 1, 3))])
            R += sm(1, qs)
            rd14, vf14 = Yrd(14); rd15, vf15 = Yrd(15)
            R += rd14 + rd15
            if qs[0] == 0:
                R += Ym(vf14, 0, qs) + Ls(0, qs) + Ls(1, qs)
                for q in qs: R += [f"    v_accvgpr_read_b32 v{16+q}, a{LS(q)}", f"    v_rcp_f32 v{20+q}, v{16+q}"]
                R += Ym(vf15, 1, qs) + norm(0) + norm(1)
                R += [dep([f"    s_waitcnt vmcnt({vmx.wait(['G14', 'M', 'ky'])})"], w=["BAR8"])]
                R += [dep([f"    s_cmp_eq_u32 {S_D0}, 1", "    s_cbranch_scc1 L_keys", "L_nokeys:"], r=["VM"], w=["VM"], ww=["v[64:71]", "v[80:87]", "vcc", S_T0, S_T1], rr=[V_TD, "v11"])]
            else:
                for q in qs:
                    R += Ym(vf14, 0, [q]) + Ls(0, [q]) + Ls(1, [q]) + [f"    v_accvgpr_read_b32 v{16+q}, a{LS(q)}", f"    v_rcp_f32 v{20+q}, v{16+q}"]
                    R += Ym(vf15, 1, [q]) + norm(q)
        OPT["pw"] = 8
    else:
        OPT["pw"] = 20
        SB = 0 if OPT.get("sb") else 1
        R += stampnode([v4r(S(SB, 1, 3))])
        R += [dep([f"    s_waitcnt vmcnt({vmx.wait(['G14', 'M', 'ky'])})"], w=["BAR8"], rr=[v4r(S(SB, 0, 2))])]
        R += [dep([f"    s_cmp_eq_u32 {S_D0}, 1", "    s_cbranch_scc1 L_keys", "L_nokeys:"], r=["VM"], w=["VM"], ww=["v[64:71]", "v[80:87]", "vcc", S_T0, S_T1], rr=[V_TD, "v11"])]
        R.insert(-2, [f"    s_cmp_lt_u32 {S_FS}, {0 if OPT.get('noprod') else NPROD}", f"    s_cselect_b32 {S_D0}, 1, 0"])
        R.insert(-2, [f"    s_cmp_eq_u32 {S_W}, 2", f"    s_cselect_b32 {S_D0}, {S_D0}, 0"])
        R += a_reads(14, r=["BAR8"], w="A8")
        R += wo_dma(19, r=tags("A8"))
        V15 = lambda db: 64 + 4 * db
        R += [f"    ds_read_b64_tr_b16 a[{V15(db)+2*p}:{V15(db)+2*p+1}], {V_VC2} offset:{FV - KSZ - 2*PS + p*512 + db*32}" for db in range(8) for p in range(2)]
        R += [f"    s_lshl_b32 {S_T2}, {S_QB}, 21", f"    s_lshl_b32 {S_T1}, {S_W}, 19", f"    s_add_u32 {S_T2}, {S_T2}, {S_T1}",
              f"    s_lshl_b32 {S_T1}, {S_H}, 12", f"    s_add_u32 {S_T2}, {S_T2}, {S_T1}"]
        for q in range(4):
            R += [mf(O(db, q), VF(db), P(0, q), O(db, q), bk="v") for db in range(8)] + [mf(LS(q), ONES, P(0, q), LS(q), dk="a", ak="v", bk="v")]
            R += sm2(SB, SB, [q])
            R += [mf(LS(q), ONES, P(SB, q), LS(q), dk="a", ak="v", bk="v")]
            R += [f"    v_accvgpr_read_b32 v{16+q}, a{LS(q)}", f"    v_rcp_f32 v{20+q}, v{16+q}"]
            R += [mf(O(db, q), V15(db), P(SB, q), O(db, q), bk="v") for db in range(8)]
            for u in range(4):
                a, b = O(2 * u, q), O(2 * u + 1, q)
                for r in (a, b):
                    if OPT.get("pkO"): R += [f"    v_pk_mul_f32 v[{r+i}:{r+i+1}], v[{r+i}:{r+i+1}], v[{20+(q&2)}:{21+(q&2)}] op_sel:[0,{q&1}] op_sel_hi:[1,{q&1}]" for i in (0, 2)]
                    else: R += [f"    v_mul_f32 v{r+i}, v{r+i}, v{20+q}" for i in range(4)]
                R += [f"    v_cvt_pk_bf16_f32 v{a}, v{a}, v{a+1}", f"    v_cvt_pk_bf16_f32 v{a+1}, v{a+2}, v{a+3}",
                      f"    v_cvt_pk_bf16_f32 v{a+2}, v{b}, v{b+1}", f"    v_cvt_pk_bf16_f32 v{a+3}, v{b+2}, v{b+3}",
                      f"    buffer_store_dwordx4 {v4r(a)}, {V_L0}, {SRD_WS}, {S_T2} offen offset:{u*1024} sc1"]
            if q < 3: R += [f"    s_add_u32 {S_T2}, {S_T2}, 131072"]
    R += ["    v_add_f32 v24, v16, v17", "    v_add_f32 v25, v18, v19", "    v_add_f32 v24, v24, v25", f"    v_mov_b32 v26, {FLAG}",
          [f"    v_cmp_nge_f32 vcc, {f32(THR)}, v24", "    s_nop 0", "    s_mov_b64 exec, vcc", "    ds_write_b32 v26, v26", "    s_mov_b64 exec, -1"]]
    e(schedule(R, verbose="att"))
    e(["    s_waitcnt lgkmcnt(0)", "    s_barrier", "    ds_read_b32 v27, v26"])
    ST()
    FX = "0xffffffff" if OPT.get("flf") else "1"
    HKC = f"""    v_lshlrev_b32 v1, 5, v15
    s_xor_b32 {S_HK}, {S_QT}, 1
    s_lshl_b32 {S_HK}, {S_HK}, 12
    s_lshl_b32 {S_T1}, {S_T2}, 11
    s_add_u32 {S_HK}, {S_HK}, {S_T1}
    s_lshl_b32 {S_T1}, {S_W}, 9
    s_add_u32 {S_HK}, {S_HK}, {S_T1}
    s_add_u32 {S_HK}, {S_HK}, {WS_F2}""" if OPT.get("flf") else f"""    v_and_b32 v1, 12, v18
    s_xor_b32 {S_HK}, {S_QT}, 1
    s_lshl_b32 {S_HK}, {S_HK}, 9
    s_lshl_b32 {S_T1}, {S_T2}, 8
    s_add_u32 {S_HK}, {S_HK}, {S_T1}
    s_lshr_b32 {S_T1}, {S_W}, 1
    s_lshl_b32 {S_T1}, {S_T1}, 7
    s_add_u32 {S_HK}, {S_HK}, {S_T1}
    s_and_b32 {S_T1}, {S_W}, 1
    s_lshl_b32 {S_T1}, {S_T1}, 4
    s_add_u32 {S_HK}, {S_HK}, {S_T1}
    s_add_u32 {S_HK}, {S_HK}, {WS_F}"""
    e(f"    v_subrev_u32 v4, {3*PS}, {V_AA}")
    e(srd(4, PX, "0x200000"))
    e(f"""    v_mov_b32 v29, {V_TD}
    v_lshrrev_b32 {V_LN}, 4, {V_L0}
    v_lshrrev_b32 v13, 4, {V_LN}               ; g
    s_lshl_b32 {S_OB}, {S_QT}, 19
    s_lshl_b32 {S_T0}, {S_W}, 14
    s_add_u32 {S_OB}, {S_OB}, {S_T0}
    s_and_b32 {S_T2}, {S_QT}, 1
    s_lshl_b32 {S_T0}, {S_T2}, 16
    s_add_u32 {S_OB}, {S_OB}, {S_T0}
    s_lshl_b32 {S_T0}, {S_RHO}, 10
    s_add_u32 {S_OB}, {S_OB}, {S_T0}
    s_lshl_b32 {S_XT}, {S_QT}, 16
    s_lshl_b32 {S_T0}, {S_NT}, 7
    s_add_u32 {S_XT}, {S_XT}, {S_T0}
    s_lshl_b32 {S_T0}, {S_W}, 14
    s_add_u32 {S_XT}, {S_XT}, {S_T0}
    v_and_b32 v12, 15, {V_LN}                  ; i16
    v_lshlrev_b32 v11, 10, v12
    v_lshl_add_u32 v11, v13, 3, v11
    v_lshlrev_b32 v14, 6, v12
    s_lshl_b32 {S_T0}, {S_QT}, 12
    s_lshl_b32 {S_T1}, {S_W}, 10
    s_add_u32 {S_T0}, {S_T0}, {S_T1}
    s_add_u32 {S_FK}, {S_T0}, {WS_ST2}
    v_lshlrev_b32 v16, 2, {V_LN}
    v_mov_b32 v17, {S_TAG}
    v_lshl_add_u32 v7, {S_W}, 17, {V_L0}
    v_xor_b32 v8, 0x20000, v7
    v_xor_b32 v9, 0x40000, v7
    v_xor_b32 v10, 0x60000, v7
    v_and_b32 v18, 7, {V_LN}
    v_lshlrev_b32 v18, 2, v18
    v_and_b32 v15, 12, v18
{HKC}
    s_waitcnt lgkmcnt(0)
    v_readfirstlane_b32 {S_T1}, v27
    s_cmp_lg_u32 {S_T1}, 0
    s_cbranch_scc1 L_slow
L_slow_back:
    s_cmp_eq_u32 {S_D0}, 1
    s_cbranch_scc1 L_prod1
L_prod1b:""")
    e(a_reads(13) + a_reads(16) + a_reads(17))
    NPRE = OPT.get("npre", 2)
    for t in LG[:NPRE]: e(wo_dma(t))
    e(f"""    s_cmp_eq_u32 {S_D0}, 1
    s_cbranch_scc1 L_noflag
    s_waitcnt vmcnt({4*NPRE})
    s_mov_b32 exec_lo, {FX}
    s_mov_b32 exec_hi, 0
    buffer_store_dword v17, v16, {SRD_WS}, {S_FO} offen sc1
    s_mov_b64 exec, -1
L_noflag:""")
    ST()
    vm = VM()
    def vwait(tag):
        n = vm.wait([tag])
        return [] if n is None else [f"    s_waitcnt vmcnt({n})"]
    e("    s_waitcnt lgkmcnt(0)")
    for t in LG[:NPRE]: vm.add(("G", t), 4)
    for t in LG[NPRE:6]: e(wo_dma(t)); vm.add(("G", t), 4)
    e(["    s_branch L_g3", "L_gback:"])
    xl = [f"    buffer_load_dwordx2 v[{24+2*nb}:{25+2*nb}], v11, {SRD_X}, {S_XT} offen offset:{nb*32}" for nb in range(4)] + [f"    buffer_load_dwordx2 v[22:23], v14, {SRD_WS}, {S_FK} offen sc1"]
    e([f"    s_cmp_eq_u32 {S_D0}, 1", "    s_cbranch_scc1 L_prod", "L_noprod:"])
    gp = unpack(48, 24, 8) + [f"    v_sub_f32 v{48+j}, v{48+j}, v22" for j in range(16)] + pack(32, 48, 8) + unpack(48, 32, 8)
    gp += [f"    v_mul_f32 v{48+j}, v{48+j}, v23" for j in range(16)] + pack(32, 48, 8)
    f = [f"    v_mul_f32 v{192+j}, {f32(-LOG2E)}, v{48+j}" for j in range(16)] + [f"    v_exp_f32 v{192+j}, v{192+j}" for j in range(16)]
    f += [f"    v_add_f32 v{192+j}, 1.0, v{192+j}" for j in range(16)] + [f"    v_rcp_f32 v{192+j}, v{192+j}" for j in range(16)]
    f += [f"    v_mul_f32 v{48+j}, v{48+j}, v{192+j}" for j in range(16)] + pack(192, 48, 8) + unpack(48, 192, 8)
    OPT["silu"] = f
    gp += unpack(48, 32, 8) + f
    gp2 = unpack(240, 24, 8)
    vm.add("~ps")
    e(vwait(("G", LG[1])) + a_reads(LG[0]) + a_reads(LG[1]))
    e(f"    buffer_load_dword v19, v1, {SRD_WS}, {S_HK} offen sc1"); vm.add("p")
    e("    s_waitcnt lgkmcnt(0)")
    for t in LG[6:8]: e(wo_dma(t)); vm.add(("G", t), 4)
    ST()
    e(vwait("p") + [f"    v_cmp_ne_u32 vcc, {S_TAG}, v19", "    s_cmp_lg_u64 vcc, 0", "    s_cbranch_scc1 L_fp", "L_fp_ok:"])
    ST()
    for t in range(4):
        e([o_off(t)] + [o_load(t, q) for q in range(4)]); vm.add(("O", t), 4)
        if not OPT.get("lr"): e(a_reads(LG[2 + t]))
    if not OPT.get("lr"): e("    s_waitcnt lgkmcnt(0)")
    MBS = OPT.get("mbs", 18); G4 = MBS + OPT.get("xsd", 3); G3 = G4 - 5; C1 = G4 + 4; C2 = C1 + 2
    Z = []
    def wn(lines, w=(), gate=(), **kw):
        return [dep(lines, r=["VM"] + list(kw.pop("r", ())), w=["VM"] + list(w), rr=list(gate) + list(kw.pop("rr", ())), **kw)] if lines else []
    XL = [f"    buffer_load_dwordx4 {v4r(128+4*k)}, {V_L0}, {SRD_WS}, {S_HK if k < 4 else S_FO} offen offset:{(k&3)*1024} sc1" for k in range(6)]
    lastO = None
    for t in range(32):
        g = EX[t & 15]
        gate = [v4r(ACX(t - 1, 0, OPT.get("gq", 2)))] if t else []
        w_ = vwait(("O", t))
        if w_: Z += wn(w_, w=[f"O{t}"], gate=gate); lastO = f"O{t}"
        if t in (1, 16): Z += stampnode(gate)
        if OPT.get("lr"):
            if 0 <= t < 6: Z += a_reads(LG[2 + t], r=[lastO])
        elif t in (1, 2): Z += a_reads(LG[5 + t], r=[lastO])
        if t == 12: Z += wn(vwait("p") + [f"    v_cmp_ne_u32 vcc, {S_TAG}, v19", "    s_nop 0", "    s_cmp_lg_u64 vcc, 0", "    s_cbranch_scc1 L_fq", "L_fq_ok:"], gate=gate, ww=["v19"], rr=[S_HK, "v1"])
        if t == 5 + OPT.get('xlp', 0):
            Z += wn(vwait("d") + [f"    v_cmp_ne_u32 vcc, {S_TAG}, v23", "    s_nop 0", "    s_cmp_lg_u64 vcc, 0", "    s_cbranch_scc1 L_gx", "L_gx_ok:"], gate=gate, ww=["v[22:31]"])
            Z += ["    v_and_b32 v23, 0xffff0000, v22", "    v_rcp_f32 v23, v23", "    v_lshlrev_b32 v22, 16, v22"] + gp; gp = []
        if t == 16:
            Z += [f"    v_add_u32 v19, {S_LB}, {V_L0}", f"    v_add_u32 v19, {3*PS}, v19"]
            Z += [dep(f"    ds_write_b128 v19, {v4r(ACC(nb,q))} offset:{WOFF[q+2] - 3*PS + nb*1024}", w=[f"XW{q}{nb}"]) for q in range(1, 4) for nb in range(4)]
        if t == MBS + 1:
            Z += wn(["    s_barrier"], w=["XBAR"], gate=gate, r=[f"XW{q}{nb}" for q in range(1, 4) for nb in range(4)])
            for j in range(1, 4):
                Z += [f"    s_xor_b32 {S_WGO}, {S_W}, {j}", f"    s_mul_i32 {S_WGO}, {S_WGO}, {SL}", f"    s_add_u32 {S_WGO}, {S_WGO}, {3*PS}", f"    v_add_u32 v{3+j}, {S_WGO}, {V_L0}"]
                Z += [dep(f"    ds_read_b128 {v4r(176+16*j+4*nb)}, v{3+j} offset:{WOFF[j+2] - 3*PS + nb*1024}", r=["XBAR"], bias=800) for nb in range(4)]
            Z += [f"    v_add_f32 v{240+i}, v{240+i}, v{192+i}" for i in range(16)] + [f"    v_add_f32 v{240+i}, v{240+i}, v{208+i}" for i in range(16)]
            Z += [f"    v_add_f32 v{192+4*(i//3)+i%3}, v{240+i}, v{224+i}" for i in range(16)] + [f"    v_mov_b32 v{195+4*k}, v17" for k in range(6)]
            Z += [f"    s_mul_i32 {S_WGO}, s2, 24576", f"    s_mul_i32 {S_WB}, {S_W}, 6144", f"    s_add_u32 {S_WB}, {S_WB}, {WS_X}", f"    s_add_u32 {S_WGO}, {S_WGO}, {S_WB}",
                  f"    s_xor_b32 {S_HK}, s2, 1", f"    s_mul_i32 {S_HK}, {S_HK}, 24576", f"    s_add_u32 {S_HK}, {S_HK}, {S_WB}", f"    s_add_u32 {S_WB}, {S_WGO}, 4096", f"    s_add_u32 {S_FO}, {S_HK}, 4096"]
        if t == MBS + OPT.get("xsd", 3):
            Z += [f"    buffer_store_dwordx4 {v4r(192+4*k)}, {V_L0}, {SRD_WS}, {S_WGO if k < 4 else S_WB} offen offset:{(k&3)*1024} sc1" for k in range(6)]; vm.add("xs", 6); Z += gp2; gp2 = []
        k, r = BLK(g); ok, orr = OB_(t)
        first = True
        if t + 4 < 32: Z.append(o_off(t + 4))
        for q in ((1, 2, 3, 0) if t in (15, 31) else range(4)):
            for nb in range(4):
                m_ = mf(ACX(t, nb, q), r + 4 * nb, orr + 4 * q, "0" if t in (0, 16) else ACX(t, nb, q), ak=k, bk=ok)
                Z.append(dep(m_, r=[lastO]) if first else m_); first = False
            if t + 4 < 32: Z.append(o_load(t + 4, q)); vm.add(("O", t + 4))
        if t == OPT.get('xlp', 0): Z += xl; vm.add("d", 5)
        if t == 7: Z += [f"    s_xor_b32 {S_HK}, {S_HK}, {4096 if OPT.get('flf') else 512}", f"    buffer_load_dword v19, v1, {SRD_WS}, {S_HK} offen sc1"]; vm.add("p")
        if t == OPT.get("xlt", 29): Z += [dep(x, rr=gate) for x in XL]; vm.add("xl", 6)
        g2 = [v4r(ACX(t, 0, 1))]
        TMP = [S_T0, S_T1, S_T2, "vcc", "v15", "s[60:63]"]
        if t == 0: Z += wn(vwait("~ps") + [f"    s_cmp_eq_u32 {S_D0}, 1", "    s_cbranch_scc1 L_psig", "L_psigb:"], ww=TMP[:1])
        if t == G3: Z += wn([f"    s_cmp_lg_u32 {S_T3}, 0", "    s_cbranch_scc1 L_g3b", "L_g3bk:"], gate=g2, ww=TMP + ["v[46:47]"]); vm.add("~mf")
        if t == G4: Z += wn(vwait("~mf") + [f"    s_cmp_lg_u32 {S_T3}, 0", "    s_cbranch_scc1 L_g4", "L_g4back:"], gate=g2, ww=TMP + ["v20", "v[46:47]", "v[192:239]"]); vm.add("~pl")
        if t == C1: OPT["plw"] = vm.peek(["~pl"]); Z += wn([f"    s_cmp_lg_u32 {S_T3}, 0", "    s_cbranch_scc1 L_c1", "L_c1_back:"], gate=g2, ww=TMP + ["v20", "v[192:239]"])
        if t == C2: Z += wn([f"    s_cmp_lg_u32 {S_OWN}, 0", "    s_cbranch_scc1 L_cons", "L_cons_back:"], gate=g2, ww=TMP + ["v[20:21]", "v[192:223]", "v[32:39]", "v[48:63]"])
    import sched as _s2
    ov = _s2.VMC; _s2.VMC = OPT.get("gvmc", 56)
    zz = schedule(Z, verbose="gemm"); _s2.VMC = ov
    if OPT.get("znow"): zz = [x for x in zz if "vmcnt" not in x]
    if OPT.get("znobar"): zz = [x for x in zz if "s_barrier" not in x]
    if OPT.get("znodma"): zz = [x for x in zz if " lds" not in x]
    if OPT.get("znoo"): zz = [x for x in zz if not ("buffer_load_dwordx4" in x and "s40" in x)]
    e(zz)
    assert not gp and not gp2
    OPT["XL"] = XL
    ST()
    e(f"    v_add_u32 v18, {S_LB}, {V_L0}")
    for q in range(1, 4):
        for nb in range(4): e(f"    ds_write_b128 v18, {v4r(ACC(nb,q))} offset:{WOFF[q-1] + nb*1024}")
    for j in range(1, 4):
        e([f"    s_xor_b32 {S_T0}, {S_W}, {j}", f"    s_mul_i32 {S_T0}, {S_T0}, {SL}", f"    v_add_u32 v{7+j}, {S_T0}, {V_L0}"])
    e(srd(12, POUT, "0x200000"))
    e(["    v_and_b32 v19, 1, v13", "    v_lshrrev_b32 v20, 1, v13", "    v_lshl_add_u32 v19, v19, 1, v20", "    v_lshlrev_b32 v19, 4, v19", "    v_lshl_add_u32 v19, v12, 10, v19"])
    OPT["xc"] = [f"    v_xor_b32 v{131+4*k}, {S_TAG}, v{131+4*k}" for k in range(6)] + ["    v_or3_b32 v131, v131, v135, v139", "    v_or3_b32 v143, v143, v147, v151", "    v_or_b32 v131, v131, v143", "    v_cmp_ne_u32 vcc, 0, v131"]
    e(["    s_waitcnt vmcnt(0)"] + OPT["xc"] + ["    s_cmp_lg_u64 vcc, 0", "    s_cbranch_scc1 L_xx", "L_xx_ok:"])
    e([f"    v_add_f32 v{64+i}, v{64+i}, v{128+4*(i//3)+i%3}" for i in range(16)])
    e("    s_waitcnt lgkmcnt(0)\n    s_barrier")
    ST()
    e([f"    ds_read_b128 {v4r(64+16*j+4*nb)}, v{7+j} offset:{WOFF[j-1] + nb*1024}" for j in range(1, 4) for nb in range(4)])
    e("    s_waitcnt lgkmcnt(8)")
    e([f"    v_pk_add_f32 v[{64+j}:{65+j}], v[{64+j}:{65+j}], v[{80+j}:{81+j}]" for j in range(0, 16, 2)])
    e("    s_waitcnt lgkmcnt(0)")
    e([f"    v_pk_add_f32 v[{96+j}:{97+j}], v[{96+j}:{97+j}], v[{112+j}:{113+j}]" for j in range(0, 16, 2)])
    e([f"    v_pk_add_f32 v[{64+j}:{65+j}], v[{64+j}:{65+j}], v[{96+j}:{97+j}]" for j in range(0, 16, 2)])
    e(pack(80, 64, 8) + unpack(64, 80, 8) + [f"    v_pk_mul_f32 v[{64+j}:{65+j}], v[{64+j}:{65+j}], v[{48+j}:{49+j}]" for j in range(0, 16, 2)] + pack(80, 64, 8) + unpack(64, 80, 8))
    e([f"    v_pk_add_f32 v[{64+j}:{65+j}], v[{64+j}:{65+j}], v[{240+j}:{241+j}]" for j in range(0, 16, 2)] + pack(80, 64, 8))
    if OPT.get("stfin"): ST()
    if OPT.get("st4"):
        e([f"    v_permlane16_swap_b32 v{80+4*h_+i}, v{82+4*h_+i}" for h_ in range(2) for i in range(2)])
        e([f"    buffer_store_dwordx4 {v4r(80+4*h_)}, v19, {SRD_OUT}, {S_XT} offen offset:{h_*64}" for h_ in range(2)])
    else:
        e([f"    buffer_store_dwordx2 v[{80+2*nb}:{81+2*nb}], v11, {SRD_OUT}, {S_XT} offen offset:{nb*32}" for nb in range(4)])
    if stamp:
        e("    s_waitcnt vmcnt(0)")
        ST()
        e(["    s_memrealtime s[90:91]", "    s_waitcnt lgkmcnt(0)", "    v_writelane_b32 v0, s90, 31",
           f"    s_lshl_b32 {S_T0}, s2, 10", f"    s_lshl_b32 {S_T1}, {S_W}, 8", f"    s_add_u32 {S_T0}, {S_T0}, {S_T1}", f"    s_add_u32 {S_T0}, {S_T0}, 0x1080000",
           f"    v_lshlrev_b32 v1, 2, {V_LN}", f"    buffer_store_dword v0, v1, {SRD_WS}, {S_T0} offen"])
    if OPT.get("dbgst"):
        sel = OPT.get("dbgsel", [3, 5, 8, 9, 10, 12, 16, 18])
        e([f"    s_cmp_lg_u32 s2, {OPT['dbgst']}", "    s_cbranch_scc1 L_end", f"    s_cmp_lg_u32 {S_W}, 0", "    s_cbranch_scc1 L_end", "    v_readlane_b32 s60, v0, 30"])
        for i, k in enumerate(sel):
            e([f"    v_readlane_b32 s61, v0, {32+k}", "    s_nop 3", "    s_sub_u32 s61, s61, s60", "    v_mov_b32 v1, s61", "    v_mov_b32 v4, 0", "    s_mov_b64 exec, 1",
               f"    global_store_dword v4, v1, {S_DBG} offset:{32+4*i}", "    s_mov_b64 exec, -1"])
    if OPT.get("mag") is not None:
        k = OPT["mag"]
        e(([] if OPT.get("magall") else [f"    s_cmp_lg_u32 s2, {OPT.get('magwg', 100)}", "    s_cbranch_scc1 L_end", f"    s_cmp_lg_u32 {S_W}, {OPT.get('magw', 0)}", "    s_cbranch_scc1 L_end"]) + ["    v_readlane_b32 s60, v0, 30",
           f"    v_readlane_b32 s61, v0, {32+k if k >= 0 else 30}", "    s_nop 3", "    s_sub_u32 s61, s61, s60", "    s_lshl_b32 s61, s61, 2", "    s_add_u32 s61, s61, 6000",
           "L_mag:", "    s_sleep 8", "    s_memrealtime s[90:91]", "    s_waitcnt lgkmcnt(0)", "    s_sub_u32 s90, s90, s60", "    s_cmp_lt_u32 s90, s61", "    s_cbranch_scc1 L_mag"])
    e("L_end:\n    s_endpgm")
    e(["L_sp1x:", f"    s_mov_b32 {S_SP}, 0", "L_sp1x1:", "    s_sleep 4"] + [f"    buffer_load_dwordx2 v[{STQ(q)}:{STQ(q)+1}], v43, {SRD_WS}, {S_FK} offen offset:{q*1024} sc1" for q in range(4)] + ["    s_waitcnt vmcnt(0)"] + OPT["tchk"] + ["    s_cmp_eq_u64 vcc, 0", "    s_cbranch_scc1 L_sp1_ok",
       f"    s_add_u32 {S_SP}, {S_SP}, 1", f"    s_cmp_lt_u32 {S_SP}, {OPT['spin']}", "    s_cbranch_scc1 L_sp1x1", "    s_branch L_sp1_ok"])
    if OPT.get("csh"):
        e(["L_csx:", f"    s_mov_b32 {S_SP}, 0", "L_csx1:", "    s_sleep 4"] + OPT["csl"] + ["    s_waitcnt vmcnt(0)"] + OPT["ck"] + ["    s_cmp_eq_u64 vcc, 0", "    s_cbranch_scc1 L_cs_ok",
           f"    s_add_u32 {S_SP}, {S_SP}, 1", f"    s_cmp_lt_u32 {S_SP}, {OPT['spin']}", "    s_cbranch_scc1 L_csx1", "    s_branch L_cs_ok"])
    e(["L_fq:", f"    s_mov_b32 {S_SP}, 0", "L_fq1:", f"    buffer_load_dword v19, v1, {SRD_WS}, {S_HK} offen sc1", "    s_waitcnt vmcnt(0)",
       f"    v_cmp_ne_u32 vcc, {S_TAG}, v19", "    s_cmp_eq_u64 vcc, 0", "    s_cbranch_scc1 L_fq_ok", f"    s_sleep {OPT.get('slp', 6)}",
       f"    s_add_u32 {S_SP}, {S_SP}, 1", f"    s_cmp_lt_u32 {S_SP}, {OPT['spin']}", "    s_cbranch_scc1 L_fq1", "    s_branch L_fq_ok"])
    e(["L_xx:", f"    s_mov_b32 {S_SP}, 0", "L_xx1:", "    s_sleep 4"] + OPT["XL"] + ["    s_waitcnt vmcnt(0)"] + OPT["xc"] + ["    s_cmp_eq_u64 vcc, 0", "    s_cbranch_scc1 L_xx_ok",
       f"    s_add_u32 {S_SP}, {S_SP}, 1", f"    s_cmp_lt_u32 {S_SP}, {OPT['spin']}", "    s_cbranch_scc1 L_xx1", "    s_branch L_xx_ok"])
    e(["L_gx:", f"    s_mov_b32 {S_SP}, 0", "L_gx1:", "    s_sleep 4"] + [f"    buffer_load_dwordx2 v[22:23], v14, {SRD_WS}, {S_FK} offen sc1", "    s_waitcnt vmcnt(0)", f"    v_cmp_ne_u32 vcc, {S_TAG}, v23"] + ["    s_cmp_eq_u64 vcc, 0", "    s_cbranch_scc1 L_gx_ok",
       f"    s_add_u32 {S_SP}, {S_SP}, 1", f"    s_cmp_lt_u32 {S_SP}, {OPT['spin']}", "    s_cbranch_scc1 L_gx1", "    s_branch L_gx_ok"])
    e(["L_px:", f"    s_mov_b32 {S_SP}, 0", "L_px1:", "    s_sleep 4"] + [f"    buffer_load_dwordx2 v[68:69], v66, {SRD_WS}, {S_T1} offen sc1", "    s_waitcnt vmcnt(0)", f"    v_cmp_ne_u32 vcc, {S_TAG}, v69"] + ["    s_cmp_eq_u64 vcc, 0", "    s_cbranch_scc1 L_px_ok",
       f"    s_add_u32 {S_SP}, {S_SP}, 1", f"    s_cmp_lt_u32 {S_SP}, {OPT['spin']}", "    s_cbranch_scc1 L_px1", "    s_branch L_px_ok"])
    e(["L_slow:", f"    s_cmp_lg_u32 {S_PASS}, 0", "    s_cbranch_scc1 L_slow_back", "    s_waitcnt vmcnt(0) lgkmcnt(0)",
       "    v_and_b32 v20, 1, v13", "    v_lshrrev_b32 v21, 1, v13", "    v_lshl_add_u32 v20, v20, 1, v21", "    v_lshlrev_b32 v20, 4, v20", "    v_lshl_add_u32 v20, v12, 8, v20",
       f"    s_mov_b32 {S_T0}, 0"] + [f"    v_mov_b32 v{16+q}, 0xff800000" for q in range(4)] + ["L_sl1:"])
    e([f"    buffer_load_dwordx4 {v4r(64+4*s_)}, v20, {SRD_K}, {S_T0} offen offset:{s_*64}" for s_ in range(4)] + ["    s_waitcnt vmcnt(0)"])
    for q in range(4):
        for s_ in range(4): e(mf(80 + 4 * q, 64 + 4 * s_, QF(q, s_), "0" if s_ == 0 else 80 + 4 * q, ak="v"))
    e("    s_nop 7")
    for q in range(4): e([f"    v_max3_f32 v{16+q}, v{16+q}, v{80+4*q}, v{81+4*q}", f"    v_max3_f32 v{16+q}, v{16+q}, v{82+4*q}, v{83+4*q}"])
    e([f"    s_add_u32 {S_T0}, {S_T0}, 4096", f"    s_cmp_lt_u32 {S_T0}, 0x20000", "    s_cbranch_scc1 L_sl1"])
    for sw in ("v_permlane16_swap_b32", "v_permlane32_swap_b32"):
        e([f"    v_mov_b32 v{24+q}, v{16+q}" for q in range(4)] + [f"    {sw} v{16+q}, v{24+q}" for q in range(4)] + [f"    v_max_f32 v{16+q}, v{16+q}, v{24+q}" for q in range(4)])
    e(["    v_lshlrev_b32 v20, 4, v12", f"    v_lshl_add_u32 v20, {S_W}, 8, v20", f"    v_add_u32 v20, {MF}, v20", "    ds_write_b128 v20, v[16:19]",
       f"    v_lshl_add_u32 v0, {S_W}, 6, {V_LN}", f"    s_mov_b32 {S_PASS}, 1", "    s_waitcnt lgkmcnt(0)", "    s_barrier", "    s_branch L_restart"])
    e(["L_fp:", f"    s_mov_b32 {S_SP}, 0", "L_fp1:", f"    buffer_load_dword v19, v1, {SRD_WS}, {S_HK} offen sc1", "    s_waitcnt vmcnt(0)",
       f"    v_cmp_ne_u32 vcc, {S_TAG}, v19", "    s_cmp_eq_u64 vcc, 0", "    s_cbranch_scc1 L_fp2", f"    s_sleep {OPT.get('slp', 6)}",
       f"    s_add_u32 {S_SP}, {S_SP}, 1", f"    s_cmp_lt_u32 {S_SP}, {OPT['spin']}", "    s_cbranch_scc1 L_fp1", "L_fp2:"])
    e("    s_branch L_fp_ok")
    e(["L_keys:", f"    s_mov_b32 {S_SP}, 0", "L_ky1:"] + merge8(V_TD) + [f"    s_cmp_lg_u32 {S_T0}, 0", "    s_cbranch_scc1 L_ky2",
       "    s_sleep 8", f"    global_load_dword {V_TD}, v11, {S_DBG} offset:128 sc1", "    s_waitcnt vmcnt(0)",
       f"    s_add_u32 {S_SP}, {S_SP}, 1", f"    s_cmp_lt_u32 {S_SP}, {OPT['spin']}", "    s_cbranch_scc1 L_ky1", "L_ky2:", f"    v_mov_b32 v64, {S_K0}", f"    v_mov_b32 v65, {S_K1}"])
    e(srd(4, PX, "0x200000"))
    e(f"""    v_cmp_gt_u32 vcc, 512, {V_L0}
    v_cndmask_b32 v66, v65, v64, vcc
    v_not_b32 v66, v66
    v_and_b32 v66, 2047, v66                   ; row
    v_and_b32 v67, 0x1f0, {V_L0}
    v_lshlrev_b32 v67, 1, v67
    v_lshl_add_u32 v67, v66, 10, v67
    v_lshlrev_b32 v66, 6, v66
    s_mov_b32 s60, {WS_ST2}
    buffer_load_dwordx4 v[80:83], v67, {SRD_X}, 0 offen
    buffer_load_dwordx4 v[84:87], v67, {SRD_X}, 0 offen offset:16
    buffer_load_dwordx2 v[68:69], v66, {SRD_WS}, s60 offen sc1
    s_branch L_nokeys""")
    TV = [3, 4, 7, 8, 9, 10]
    sv = [f"    v_accvgpr_write_b32 a{224+i}, v{r}" for i, r in enumerate(TV)]
    rs = [f"    v_accvgpr_read_b32 v{r}, a{224+i}" for i, r in enumerate(TV)]
    kl = [f"    s_lshl_b32 s60, {S_W}, 15", f"    s_add_u32 s60, s60, {WS_ST2+56}"]
    for j in range(8): kl += [f"    buffer_load_dword a{192+j}, v4, {SRD_WS}, s60 offen sc1", "    s_add_u32 s60, s60, 4096"]
    e(["L_hk2:"] + sv[1:2] + lane("v4") + ["    v_lshlrev_b32 v4, 6, v4"] + kl + rs[1:2] + ["    s_nop 1", "    s_branch L_hk2b"])
    e(["L_hk3:", f"    s_waitcnt vmcnt({OPT['hv3']})"] + sv + [f"    s_mov_b32 {S_SP}, 0", "    s_mov_b32 s61, 0xffff", "L_hk31:"] + lane("v4") +
      [f"    v_lshl_add_u32 v10, {S_W}, 9, v4", "    v_sub_u32 v10, 0xffff, v10", "    v_mov_b32 v8, 0", "    v_mov_b32 v9, 0", "    v_mov_b32 v7, 0"])
    for j in range(8):
        e([f"    v_accvgpr_read_b32 v3, a{192+j}", f"    v_subrev_u32 v4, {64*j}, v10", f"    v_xor_b32 v11, {S_TAG}, v3", "    v_bfi_b32 v3, s61, v4, v3", "    v_or_b32 v7, v7, v11",
           "    v_med3_u32 v9, v8, v9, v3", "    v_max_u32 v8, v8, v3"])
    e(["    v_and_b32 v7, 0xffff, v7", "    v_cmp_ne_u32 vcc, 0, v7", "    s_cmp_eq_u64 vcc, 0", "    s_cbranch_scc1 L_hk32", "    s_sleep 8"] + lane("v4") + ["    v_lshlrev_b32 v4, 6, v4"] + kl +
      ["    s_waitcnt vmcnt(0)", f"    s_add_u32 {S_SP}, {S_SP}, 1", f"    s_cmp_lt_u32 {S_SP}, {OPT['spin']}", "    s_cbranch_scc1 L_hk31", "L_hk32:"])
    comb = ["    v_min_u32 v7, v8, v3", "    v_max_u32 v8, v8, v3", "    v_max3_u32 v9, v9, v4, v7"]
    for md in ("quad_perm:[1,0,3,2]", "quad_perm:[2,3,0,1]", "row_half_mirror", "row_mirror"):
        e([f"    v_mov_b32_dpp v3, v8 {md} row_mask:0xf bank_mask:0xf", f"    v_mov_b32_dpp v4, v9 {md} row_mask:0xf bank_mask:0xf"] + comb)
    for sw in ("v_permlane16_swap_b32", "v_permlane32_swap_b32"):
        e(["    v_mov_b32 v3, v8", "    v_mov_b32 v4, v9", f"    {sw} v8, v3", f"    {sw} v9, v4"] + comb)
    e(["    s_mov_b64 exec, 1", f"    s_lshl_b32 s60, {S_W}, 3", "    v_mov_b32 v10, s60", f"    global_store_dwordx2 v10, v[8:9], {S_DBG} offset:128 sc1", "    s_mov_b64 exec, -1", "    s_nop 3"] + rs + ["    s_nop 1", "    s_branch L_hk3b"])
    npr = 0 if OPT.get('noprod') else NPROD
    e(["L_g3:", f"    s_mov_b32 {S_SP}, 0", "L_g3c:"] + merge8("v29") + [f"    s_cmp_lg_u32 {S_T0}, 0", "    s_cbranch_scc1 L_g3ok",
       "    s_sleep 16", f"    global_load_dword v29, v18, {S_DBG} offset:128 sc1", "    s_waitcnt vmcnt(0)",
       f"    s_add_u32 {S_SP}, {S_SP}, 1", f"    s_cmp_lt_u32 {S_SP}, {OPT['spin']}", "    s_cbranch_scc1 L_g3c", "L_g3ok:",
       f"    s_not_b32 {S_I0}, {S_K0}", f"    s_and_b32 {S_I0}, {S_I0}, 2047", f"    s_not_b32 {S_I1}, {S_K1}", f"    s_and_b32 {S_I1}, {S_I1}, 2047",
       f"    s_lshl_b32 {S_T0}, {S_QT}, 2", f"    s_add_u32 {S_T0}, {S_T0}, {S_W}", f"    s_lshr_b32 {S_T1}, {S_I0}, 4", f"    s_lshr_b32 {S_T2}, {S_I1}, 4",
       f"    s_cmp_eq_u32 {S_T0}, {S_T1}", f"    s_cselect_b32 {S_OWN}, 1, 0", f"    s_cmp_eq_u32 {S_T0}, {S_T2}", f"    s_cselect_b32 {S_T0}, 2, 0", f"    s_or_b32 {S_OWN}, {S_OWN}, {S_T0}",
       f"    s_lshr_b32 {S_T1}, {S_T1}, 2", f"    s_lshr_b32 {S_T2}, {S_T2}, 2",
       f"    s_cmp_eq_u32 {S_QT}, {S_T1}", f"    s_cselect_b32 {S_T3}, 1, 0", f"    s_cmp_eq_u32 {S_QT}, {S_T2}", f"    s_cselect_b32 {S_T1}, 2, 0", f"    s_or_b32 {S_T3}, {S_T3}, {S_T1}",
       "    s_branch L_gback", "L_g3b:", f"    v_min_u32 v15, {NPROD//2-1}, {V_LN}", "    v_lshlrev_b32 v15, 8, v15", f"    v_add_u32 v15, {WS_MF2}, v15",
       f"    buffer_load_dword v46, v15, {SRD_WS}, 0 offen sc1", f"    buffer_load_dword v47, v15, {SRD_WS}, 0 offen offset:128 sc1", "    s_branch L_g3bk"])
    e(["L_g4:", f"    s_mov_b32 {S_SP}, 0", "L_g4c:", f"    v_xor_b32 v46, {S_TAG}, v46", f"    v_xor_b32 v47, {S_TAG}, v47", "    v_or_b32 v46, v46, v47", "    v_cmp_ne_u32 vcc, 0, v46",
       "    s_cmp_eq_u64 vcc, 0", "    s_cbranch_scc1 L_g4ok", "    s_sleep 4", f"    buffer_load_dword v46, v15, {SRD_WS}, 0 offen sc1", f"    buffer_load_dword v47, v15, {SRD_WS}, 0 offen offset:128 sc1", "    s_waitcnt vmcnt(0)",
       f"    s_add_u32 {S_SP}, {S_SP}, 1", f"    s_cmp_lt_u32 {S_SP}, {OPT['spin']}", "    s_cbranch_scc1 L_g4c", "L_g4ok:"])
    e(srd(16, PWS, NPROD * 4096, WS_Y))
    e(["    v_lshlrev_b32 v15, 12, v13", "    v_lshl_add_u32 v15, v12, 4, v15", f"    s_lshl_b32 {S_T0}, {S_NT}, 8", f"    s_lshl_b32 {S_T1}, {S_W}, 14", f"    s_add_u32 {S_T0}, {S_T0}, {S_T1}", f"    v_add_u32 v15, {S_T0}, v15"])
    for tok in range(2):
        e([f"    s_bitcmp1_b32 {S_T3}, {tok}", f"    s_cbranch_scc0 L_pl{tok}", "    v_mov_b32 v20, v15"])
        for k in range(6): e([f"    buffer_load_dwordx4 {v4r(192+24*tok+4*k)}, v20, {SRD_Y}, 0 offen offset:{tok*2048} sc1", "    v_add_u32 v20, 0x10000, v20"])
        e(f"L_pl{tok}:")
    e("    s_branch L_g4back")
    e(["L_c1:"] + ([] if OPT["plw"] is None else [f"    s_waitcnt vmcnt({OPT['plw']})"]) + [f"    s_lshl_b32 {S_T0}, {S_W}, 8", f"    s_add_u32 {S_T0}, {S_T0}, {FV}", f"    v_lshl_add_u32 v20, v12, 4, {S_T0}"])
    for tok in range(2):
        b_ = 192 + 24 * tok
        e([f"    s_bitcmp1_b32 {S_T3}, {tok}", f"    s_cbranch_scc0 L_c1{tok}"])
        for k in range(1, 6):
            for r in (0, 2): e(f"    v_pk_add_f32 v[{b_+r}:{b_+r+1}], v[{b_+r}:{b_+r+1}], v[{b_+4*k+r}:{b_+4*k+r+1}]")
        for sw in ("v_permlane16_swap_b32", "v_permlane32_swap_b32"):
            e([f"    v_mov_b32 v{b_+4+r}, v{b_+r}" for r in range(4)] + [f"    {sw} v{b_+r}, v{b_+4+r}" for r in range(4)] + [f"    v_add_f32 v{b_+r}, v{b_+r}, v{b_+4+r}" for r in range(4)])
        e([f"    ds_write_b128 v20, {v4r(b_)} offset:{tok*1024}", f"L_c1{tok}:"])
    e([f"    s_lshl_b32 {S_T0}, {S_W}, 2", f"    s_add_u32 {S_T0}, {S_T0}, {FV+2048}", f"    v_mov_b32 v20, {S_T0}", "    s_waitcnt lgkmcnt(0)", "    ds_write_b32 v20, v17", "    s_branch L_c1_back"])
    e(["L_cons:", f"    s_mov_b32 {S_SP}, 0", f"    v_and_b32 v20, 12, v18", f"    v_add_u32 v20, {FV+2048}, v20", "L_cw:", "    ds_read_b32 v21, v20", "    s_waitcnt lgkmcnt(0)",
       f"    v_cmp_ne_u32 vcc, {S_TAG}, v21", "    s_cmp_eq_u64 vcc, 0", "    s_cbranch_scc1 L_cn", "    s_sleep 1", f"    s_add_u32 {S_SP}, {S_SP}, 1", f"    s_cmp_lt_u32 {S_SP}, {OPT['spin']*8}", "    s_cbranch_scc1 L_cw", "L_cn:"])
    e(f"""    s_bitcmp1_b32 {S_OWN}, 0
    s_cselect_b32 {S_T0}, {S_K0}, {S_K1}
    s_cselect_b32 s60, {S_I0}, {S_I1}
    s_cselect_b32 s61, 0, 1024
    s_add_u32 s61, s61, {FV}
    v_lshl_add_u32 v20, v12, 4, s61
    ds_read_b128 v[192:195], v20
    ds_read_b128 v[196:199], v20 offset:256
    ds_read_b128 v[200:203], v20 offset:512
    ds_read_b128 v[204:207], v20 offset:768
    s_and_b32 s60, s60, 15
    s_and_b32 {S_T0}, {S_T0}, 0xffff0000
    s_xor_b32 {S_T1}, {S_T0}, 0x80000000
    s_xor_b32 {S_T2}, {S_T0}, 0xffff0000
    s_bitcmp1_b32 {S_T0}, 31
    s_cselect_b32 {S_T0}, {S_T1}, {S_T2}
    v_mov_b32 v15, {S_T0}""")
    e(sigmoid("v15", "v15", "v21") + bfround("v15", "v15") + ["    v_lshl_add_u32 v21, v13, 4, s61", "    s_waitcnt lgkmcnt(0)"])
    for k in range(1, 4): e([f"    v_add_f32 v{192+r}, v{192+r}, v{192+4*k+r}" for r in range(4)])
    for r in range(4): e(bfround(f"v{192+r}", f"v{192+r}"))
    e([f"    v_mul_f32 v{192+r}, v{192+r}, v15" for r in range(4)])
    for r in range(4): e(bfround(f"v{192+r}", f"v{192+r}"))
    e(["    ds_write_b128 v20, v[192:195]", "    s_waitcnt lgkmcnt(0)"])
    e([f"    ds_read_b128 {v4r(208+4*nb)}, v21 offset:{nb*64}" for nb in range(4)] + unpack(48, 32, 8) + ["    v_cmp_eq_u32 vcc, s60, v12", "    s_waitcnt lgkmcnt(0)"])
    e([f"    v_cndmask_b32 v{208+j}, 0, v{208+j}, vcc" for j in range(16)] + [f"    v_add_f32 v{48+j}, v{48+j}, v{208+j}" for j in range(16)] + pack(32, 48, 8))
    e([f"    s_cmp_eq_u32 {S_OWN}, 3", f"    s_mov_b32 {S_OWN}, 2", "    s_cbranch_scc1 L_cn"])
    e(unpack(48, 32, 8) + OPT["silu"] + ["    s_branch L_cons_back"])
    import sched as _sc
    old = dict(_sc.LDSC); _sc.LDSC.update({128: 8, 64: 5, 'w': 16})
    e("L_prod1:")
    e(f"""    v_bfe_u32 v56, {V_LN}, 2, 2
    v_and_b32 v57, 3, {V_LN}
    v_lshl_add_u32 v52, v13, 3, v56
    v_lshlrev_b32 v52, 5, v52
    v_lshl_add_u32 v52, v57, 3, v52
    v_add_u32 v52, {GA}, v52
    s_waitcnt vmcnt({OPT['pw']})""")
    e([f"    s_mov_b32 {S_T1}, {WS_ST2}", f"    v_cmp_ne_u32 vcc, {S_TAG}, v69", "    s_cmp_lg_u64 vcc, 0", "    s_cbranch_scc1 L_px", "L_px_ok:"])
    pm = ["    v_and_b32 v69, 0xffff0000, v68", "    v_rcp_f32 v69, v69", "    v_lshlrev_b32 v68, 16, v68"]
    pm += flat([f"""    v_and_b32 v37, 1, {V_LN}
    v_lshlrev_b32 v50, 5, {V_LN}
    v_add_u32 v50, {XN}, v50
    v_lshlrev_b32 v51, 10, v37
    v_lshl_add_u32 v51, v13, 4, v51
    v_add_u32 v51, {XN}, v51
    v_lshl_add_u32 v53, v13, 2, v56
    v_mul_u32_u24 v53, {MS}, v53
    v_lshl_add_u32 v53, v57, 3, v53
    v_add_u32 v53, {DA}, v53
    v_lshlrev_b32 v54, 11, v37
    v_lshl_add_u32 v54, v13, 4, v54
    v_lshrrev_b32 v55, 1, v12
    v_lshl_add_u32 v54, v55, 6, v54
    s_lshl_b32 {S_T0}, {S_FS}, 12
    v_add_u32 v54, {S_T0}, v54"""])
    pm += unpack(112, 80, 8) + [f"    v_sub_f32 v{112+j}, v{112+j}, v68" for j in range(16)] + pack(96, 112, 8) + unpack(112, 96, 8)
    pm += [f"    v_mul_f32 v{112+j}, v{112+j}, v69" for j in range(16)] + pack(96, 112, 8)
    pm += [dep("    ds_write_b128 v50, v[96:99]", w=["XW0"]), dep("    ds_write_b128 v50, v[100:103] offset:16", w=["XW1"])]
    pm += [dep(f"    ds_read_b128 {a4r(4*ks)}, v51 offset:{ks*64}", r=["XW0", "XW1"]) for ks in range(16)]
    for ks in range(16):
        g_, u_ = 128 + 8 * ks, 132 + 8 * ks
        for p in range(2):
            pm.append(f"    ds_read_b64_tr_b16 v[{g_+2*p}:{g_+2*p+1}], v52 offset:{ks*MS + p*128}")
            pm.append(f"    ds_read_b64_tr_b16 v[{u_+2*p}:{u_+2*p+1}], v52 offset:{UA - GA + ks*MS + p*128}")
        pm.append(mf(40, g_, 4 * ks, "0" if ks == 0 else 40, ak="v", bk="a"))
        pm.append(mf(44, u_, 4 * ks, "0" if ks == 0 else 44, ak="v", bk="a"))
    pm += [f"    ds_read_b64_tr_b16 v[{128+2*nb}:{129+2*nb}], v53 offset:{nb*32}" for nb in range(32)]
    e(schedule(pm, verbose="prod1"))
    e(["    s_waitcnt vmcnt(0)", f"    s_mov_b32 exec_lo, {FX}", "    s_mov_b32 exec_hi, 0", f"    buffer_store_dword v17, v16, {SRD_WS}, {S_FO} offen sc1", "    s_mov_b64 exec, -1", "    s_branch L_prod1b"])
    e("L_prod:")
    e(srd(16, PWS, NPROD * 4096, WS_Y))
    pm = []
    for r in range(8): pm += bfround(f"v{40+r}", f"v{40+r}")
    for r in range(4): pm += sigmoid(f"v{58+r}", f"v{40+r}", f"v{58+r}")
    pm += [f"    v_mul_f32 v{40+r}, v{40+r}, v{58+r}" for r in range(4)]
    for r in range(4): pm += bfround(f"v{40+r}", f"v{40+r}")
    pm += [f"    v_mul_f32 v{40+r}, v{40+r}, v{44+r}" for r in range(4)]
    pm += ["    v_cvt_pk_bf16_f32 v62, v40, v41", "    v_cvt_pk_bf16_f32 v63, v42, v43"]
    for m in range(8):
        pm += [f"    v_cmp_eq_u32 vcc, {m}, v55", f"    v_cndmask_b32 v{96+2*m}, 0, v62, vcc", f"    v_cndmask_b32 v{97+2*m}, 0, v63, vcc"]
        if m & 1:
            for c in range(4):
                pm.append(mf(64 + 4 * c, 128 + 2 * (8 * c + m - 1), 96 + 2 * (m - 1), "0" if m == 1 else 64 + 4 * c, ak="v", bk="v"))
    e("    s_waitcnt lgkmcnt(0)")
    e(schedule(pm, verbose="prod2"))
    for c in range(4): e(f"    buffer_store_dwordx4 {v4r(64+4*c)}, v54, {SRD_Y}, 0 offen offset:{c*512} sc1")
    e(["    s_nop 1", "    s_branch L_noprod"])
    _sc.LDSC.update(old)
    e(["L_psig:", "    s_mov_b32 exec_hi, 0", f"    s_lshl_b32 {S_T0}, {S_FS}, 7", f"    s_add_u32 {S_T0}, {S_T0}, {WS_MF2}", f"    buffer_store_dword v17, v16, {SRD_WS}, {S_T0} offen sc1", "    s_cmp_eq_u32 s2, 0", f"    s_cselect_b32 {S_T0}, {WS_E}, {S_T0}",
       f"    buffer_store_dword v17, v16, {SRD_WS}, {S_T0} offen sc1", "    s_mov_b64 exec, -1", "    s_branch L_psigb"])
    lines, n = fix_hazards(o)
    print("nops", n, "lines", len(lines))
    for nm in ():
        a = lines.index(f"L_{nm}:"); b = [i for i, l in enumerate(lines) if f"s_cbranch_scc1 L_{nm}" in l][0]
        fix_hazards(lines[a:b+1] * 2, insert=False, tag=nm)
        print(nm, "nops:", sum(1 for l in lines[a:b+1] if "; hz" in l), "instr", b - a, "waits", sum(1 for l in lines[a:b+1] if "s_waitcnt" in l))
    kd = f""".amdhsa_kernel {name}
  .amdhsa_next_free_vgpr 512
  .amdhsa_next_free_sgpr 102
  .amdhsa_accum_offset 256
  .amdhsa_group_segment_fixed_size 0
  .amdhsa_kernarg_size 104
  .amdhsa_user_sgpr_count 2
  .amdhsa_user_sgpr_kernarg_segment_ptr 1
  .amdhsa_system_sgpr_workgroup_id_x 1
.end_amdhsa_kernel"""
    return "\n".join(lines), kd

DOC = """; One persistent kernel, 256 workgroups (one per CU) x 4 waves, generated by the author's own scheduler scripts.
;     a run-time check of the row sums falls back to a pass with the exact row max (L_slow).
"""
NAME = "recurrent_scan__sliding_block_cached__moe_arch_mod__prompt"
def build(path, aslist=False, **opt):
    OPT.update(opt)
    import sched as _s
    _s.VMC = OPT.get("vmc", 76)
    hdr = open(f"cdna_kernels/{NAME}.s.ref").read().split("\n")
    hdr = [l for l in hdr if l.startswith(";") and "@launch" not in l and "Override" not in l and "grid=ceil" not in l]
    b, kd = gen_full(NAME + "_kernel")
    kn = f"kernel={NAME}_kernel " if aslist else ""
    s = "\n".join(hdr) + f"\n; @launch {kn}grid=(256,1,1) block=(256,1,1) lds={LDS_TOTAL}\n" \
        '.amdgcn_target "amdgcn-amd-amdhsa--gfx950"\n' + DOC + '.text\n' + b + "\n.fill 16, 4, 0xbf800000\nL_code_end:\n    s_endpgm\n" + '.section .rodata,"a"\n.p2align 6\n' + kd + "\n"
    open(path, "w").write(s)

if __name__ == "__main__":
    import json
    opts = json.loads(sys.argv[2]) if len(sys.argv) > 2 else {}
    tag = sys.argv[1] if len(sys.argv) > 1 else "f"
    build(f"gen/{tag}_stamp.s", aslist=True, stamp=True, **opts)
    build(f"gen/{tag}.s", stamp=bool(opts.get("dbgst") or opts.get("mag") is not None), **opts)
```

```python
from fk_att9 import *

ACC = lambda nb, q: 64 + 16 * q + 4 * nb
OB_ = lambda t: ("v", 128 + 16 * (t & 3))
HI = 3 * PS - 4 * SL
BOFF = WOFF + [DA, HI]
FB = 0x40000
V_LN = "v2"; V_L0 = "v3"
S_OB = "s31"; S_OG = "s40"
S_K0, S_K1, S_I0, S_I1 = "s42", "s43", "s44", "s45"
S_XT = "s46"; S_OWN = "s34"
SRD_Y, SRD_OUT = "s[16:19]", "s[12:15]"
THR = 2.0 ** 40
def o_group(t):
    k, r = OB_(t); o = []
    for f in range(4):
        if t < 16: ks, vo, hi = t, 7 + f, 0
        else: ks, vo, hi = 2 * (t & 7) + (f >> 1), (7 if t < 24 else 9) + (f & 1), 1
        pre = [f"    s_xor_b32 {S_OG}, {S_OB}, {(ks << 10) | (hi << 18)}"] if (f == 0 or (t >= 16 and f == 2)) else []
        o.append(pre + [f"    buffer_load_dwordx4 {k}[{r+4*f}:{r+4*f+3}], v{vo}, {SRD_WS}, {S_OG} offen sc1"])
    return o

def merge8(v):
    t = ["s60", "s61", "s62", "s63", "s90", "s91", "s96", "s97"]
    o = [f"    v_readlane_b32 {t[i]}, {v}, {i}" for i in range(8)] + ["    s_nop 0"]
    o += [f"    s_min_u32 {S_T0}, {t[1]}, {t[3]}", f"    s_min_u32 {S_T1}, {t[5]}, {t[7]}", f"    s_min_u32 {S_T0}, {S_T0}, {S_T1}"]
    def mg(a, b, c, d, ha, hb): return [f"    s_max_u32 {b}, {b}, {d}", f"    s_min_u32 {d}, {a}, {c}", f"    s_max_u32 {ha}, {a}, {c}", f"    s_max_u32 {hb}, {b}, {d}"]
    o += mg(t[0], t[1], t[2], t[3], t[0], t[1]) + mg(t[4], t[5], t[6], t[7], t[4], t[5]) + mg(t[0], t[1], t[4], t[5], S_K0, S_K1)
    return o

def gen_full(name):
    o, e, ST, nst, R, vmx, stampnode = gen_att(name)
    stamp = OPT["stamp"]
    if OPT.get("skew"):
        R += [[f"    s_cmp_lt_u32 {S_FS}, {NPROD}", f"    s_cselect_b32 {S_D0}, 1, 0"], [f"    s_cmp_eq_u32 {S_W}, 2", f"    s_cselect_b32 {S_D0}, {S_D0}, 0"]]
        R += [f"    s_lshl_b32 {S_OG}, {S_QB}, 21", f"    s_lshl_b32 {S_OB}, {S_W}, 19", f"    s_add_u32 {S_OG}, {S_OG}, {S_OB}",
              f"    s_lshl_b32 {S_OB}, {S_H}, 12", f"    s_add_u32 {S_OG}, {S_OG}, {S_OB}"]
        buf = [0]
        def nb_():
            b_ = 64 + 32 * buf[0]; buf[0] ^= 1; return b_
        def Xq(half, qs):
            b_ = nb_(); kf = lambda kb, s_: b_ + 16 * kb + 4 * s_
            return kr(7, half, kf) + qk(half, kf=kf, qs=qs)
        def Yrd(j):
            b_ = nb_(); vf = lambda db: b_ + 4 * db
            rd = vr(7, j - 13, vf) if j < 15 else [dep(f"    ds_read_b64_tr_b16 a[{vf(db)+2*p}:{vf(db)+2*p+1}], {V_VC2} offset:{FV - KSZ - 2*PS + p*512 + db*32}", r=["BAR7"]) for db in range(8) for p in range(2)]
            return rd, vf
        def Ym(vf, pb, qs): return [mf(O(db, q), vf(db), P(pb, q), O(db, q), bk="v") for db in range(8) for q in qs]
        def Ls(pb, qs): return [mf(LS(q), ONES, P(pb, q), LS(q), dk="a", ak="v", bk="v") for q in qs]
        def norm(q):
            f = []
            for u in range(4):
                a, b = O(2 * u, q), O(2 * u + 1, q)
                for r in (a, b): f += [f"    v_mul_f32 v{r+i}, v{r+i}, v{20+q}" for i in range(4)]
                f += [f"    v_cvt_pk_bf16_f32 v{a}, v{a}, v{a+1}", f"    v_cvt_pk_bf16_f32 v{a+1}, v{a+2}, v{a+3}",
                      f"    v_cvt_pk_bf16_f32 v{a+2}, v{b}, v{b+1}", f"    v_cvt_pk_bf16_f32 v{a+3}, v{b+2}, v{b+3}",
                      dep(f"    buffer_store_dwordx4 {v4r(a)}, {V_L0}, {SRD_WS}, {S_OG} offen offset:{u*1024} sc1", bias=OPT.get("stb_", 600) if q < 2 else 0)]
                vmx.add("st")
            if q < 3: f += [f"    s_add_u32 {S_OG}, {S_OG}, 131072"]
            return f
        for qs in ((0, 1), (2, 3)):
            R += Xq(0, qs) + sm(0, qs)
            rd, vf = Yrd(13); R += rd + Ym(vf, 1, qs) + Ls(1, qs)
            R += Xq(1, qs)
            if qs[0] == 2: R += stampnode([v4r(S(1, 1, 3))])
            R += sm(1, qs)
            rd14, vf14 = Yrd(14); rd15, vf15 = Yrd(15)
            R += rd14 + rd15
            if qs[0] == 0:
                R += Ym(vf14, 0, qs) + Ls(0, qs) + Ls(1, qs)
                for q in qs: R += [f"    v_accvgpr_read_b32 v{16+q}, a{LS(q)}", f"    v_rcp_f32 v{20+q}, v{16+q}"]
                R += Ym(vf15, 1, qs) + norm(0) + norm(1)
                R += [dep([f"    s_waitcnt vmcnt({vmx.wait(['G14', 'M', 'ky'])})"], w=["BAR8"])]
                R += [dep([f"    s_cmp_eq_u32 {S_D0}, 1", "    s_cbranch_scc1 L_keys", "L_nokeys:"], r=["VM"], w=["VM"], ww=["v[64:71]", "v[80:87]", "vcc", S_T0, S_T1], rr=[V_TD, "v11"])]
                vmx.add("~A")
                R += [f"    v_mov_b32 v96, {S_TAG}", f"    v_lshrrev_b32 v97, 2, {V_L0}", "    v_add_f32 v98, v16, v17"]
            else:
                for q in qs:
                    R += Ym(vf14, 0, [q]) + Ls(0, [q]) + Ls(1, [q]) + [f"    v_accvgpr_read_b32 v{16+q}, a{LS(q)}", f"    v_rcp_f32 v{20+q}, v{16+q}"]
                    nq = norm(q)
                    if q == OPT.get("afq", 2):
                        nq += [[f"    v_cmp_nge_f32 vcc, {f32(THR)}, v98", f"    s_waitcnt vmcnt({vmx.peek(['~A'])})", "    s_cmp_eq_u64 vcc, 0", f"    s_cselect_b32 {S_T2}, 1, {S_PASS}", f"    s_cmp_eq_u32 {S_T2}, 0",
                                "    s_cbranch_scc1 L_naf", "    s_mov_b32 exec_hi, 0", f"    buffer_store_dword v96, v97, {SRD_WS}, {S_FO} offen sc1", "    s_mov_b64 exec, -1", "L_naf:"]]
                    R += Ym(vf15, 1, [q]) + nq
        R += [f"    s_add_u32 {S_FO}, {S_FO}, {FB}"]
        OPT["pw"] = 8
    else:
        OPT["pw"] = 20
        SB = 0 if OPT.get("sb") else 1
        R += stampnode([v4r(S(SB, 1, 3))])
        R += [dep([f"    s_waitcnt vmcnt({vmx.wait(['G14', 'M', 'ky'])})"], w=["BAR8"], rr=[v4r(S(SB, 0, 2))])]
        R += [dep([f"    s_cmp_eq_u32 {S_D0}, 1", "    s_cbranch_scc1 L_keys", "L_nokeys:"], r=["VM"], w=["VM"], ww=["v[64:71]", "v[80:87]", "vcc", S_T0, S_T1], rr=[V_TD, "v11"])]
        R.insert(-2, [f"    s_cmp_lt_u32 {S_FS}, {0 if OPT.get('noprod') else NPROD}", f"    s_cselect_b32 {S_D0}, 1, 0"])
        R.insert(-2, [f"    s_cmp_eq_u32 {S_W}, 2", f"    s_cselect_b32 {S_D0}, {S_D0}, 0"])
        R += a_reads(14, r=["BAR8"], w="A8")
        R += wo_dma(19, r=tags("A8"))
        V15 = lambda db: 64 + 4 * db
        R += [f"    ds_read_b64_tr_b16 a[{V15(db)+2*p}:{V15(db)+2*p+1}], {V_VC2} offset:{FV - KSZ - 2*PS + p*512 + db*32}" for db in range(8) for p in range(2)]
        R += [f"    s_lshl_b32 {S_T2}, {S_QB}, 21", f"    s_lshl_b32 {S_T1}, {S_W}, 19", f"    s_add_u32 {S_T2}, {S_T2}, {S_T1}",
              f"    s_lshl_b32 {S_T1}, {S_H}, 12", f"    s_add_u32 {S_T2}, {S_T2}, {S_T1}"]
        for q in range(4):
            R += [mf(O(db, q), VF(db), P(0, q), O(db, q), bk="v") for db in range(8)] + [mf(LS(q), ONES, P(0, q), LS(q), dk="a", ak="v", bk="v")]
            R += sm2(SB, SB, [q])
            R += [mf(LS(q), ONES, P(SB, q), LS(q), dk="a", ak="v", bk="v")]
            R += [f"    v_accvgpr_read_b32 v{16+q}, a{LS(q)}", f"    v_rcp_f32 v{20+q}, v{16+q}"]
            R += [mf(O(db, q), V15(db), P(SB, q), O(db, q), bk="v") for db in range(8)]
            for u in range(4):
                a, b = O(2 * u, q), O(2 * u + 1, q)
                for r in (a, b):
                    if OPT.get("pkO"): R += [f"    v_pk_mul_f32 v[{r+i}:{r+i+1}], v[{r+i}:{r+i+1}], v[{20+(q&2)}:{21+(q&2)}] op_sel:[0,{q&1}] op_sel_hi:[1,{q&1}]" for i in (0, 2)]
                    else: R += [f"    v_mul_f32 v{r+i}, v{r+i}, v{20+q}" for i in range(4)]
                R += [f"    v_cvt_pk_bf16_f32 v{a}, v{a}, v{a+1}", f"    v_cvt_pk_bf16_f32 v{a+1}, v{a+2}, v{a+3}",
                      f"    v_cvt_pk_bf16_f32 v{a+2}, v{b}, v{b+1}", f"    v_cvt_pk_bf16_f32 v{a+3}, v{b+2}, v{b+3}",
                      f"    buffer_store_dwordx4 {v4r(a)}, {V_L0}, {SRD_WS}, {S_T2} offen offset:{u*1024} sc1"]
            if q < 3: R += [f"    s_add_u32 {S_T2}, {S_T2}, 131072"]
    R += ["    v_add_f32 v24, v16, v17", "    v_add_f32 v25, v18, v19", "    v_add_f32 v24, v24, v25", f"    v_mov_b32 v26, {FLAG}",
          [f"    v_cmp_nge_f32 vcc, {f32(THR)}, v24", "    s_nop 0", "    s_mov_b64 exec, vcc", "    ds_write_b32 v26, v26", "    s_mov_b64 exec, -1"]]
    e(schedule(R, verbose="att"))
    e(["    s_waitcnt lgkmcnt(0)", "    s_barrier", "    ds_read_b32 v27, v26"])
    ST()
    FX = "0xffffffff" if OPT.get("flf") else "1"
    HKC = f"""    v_lshlrev_b32 v1, 5, v15
    v_and_b32 v19, 16, v18
    v_lshl_add_u32 v1, v19, 8, v1
    s_lshr_b32 {S_HK}, {S_QT}, 1
    s_lshl_b32 {S_HK}, {S_HK}, 13
    s_lshl_b32 {S_T1}, {S_T2}, 11
    s_add_u32 {S_HK}, {S_HK}, {S_T1}
    s_lshl_b32 {S_T1}, {S_W}, 9
    s_add_u32 {S_HK}, {S_HK}, {S_T1}
    s_add_u32 {S_HK}, {S_HK}, {WS_F2}"""
    e(f"    v_subrev_u32 v4, {3*PS}, {V_AA}")
    e(srd(4, PX, "0x200000"))
    e(f"""    v_mov_b32 v29, {V_TD}
    v_lshrrev_b32 {V_LN}, 4, {V_L0}
    v_lshrrev_b32 v13, 4, {V_LN}               ; g
    s_lshr_b32 {S_OB}, {S_QT}, 1
    s_lshl_b32 {S_OB}, {S_OB}, 20
    s_lshl_b32 {S_T0}, {S_W}, 14
    s_add_u32 {S_OB}, {S_OB}, {S_T0}
    s_and_b32 {S_T2}, {S_QT}, 1
    s_lshl_b32 {S_T0}, {S_T2}, 16
    s_add_u32 {S_OB}, {S_OB}, {S_T0}
    s_lshl_b32 {S_T0}, {S_RHO}, 10
    s_add_u32 {S_OB}, {S_OB}, {S_T0}
    s_lshl_b32 {S_XT}, {S_QT}, 16
    s_lshl_b32 {S_T0}, {S_NT}, 7
    s_add_u32 {S_XT}, {S_XT}, {S_T0}
    s_lshl_b32 {S_T0}, {S_W}, 14
    s_add_u32 {S_XT}, {S_XT}, {S_T0}
    v_and_b32 v12, 15, {V_LN}                  ; i16
    v_lshlrev_b32 v11, 10, v12
    v_lshl_add_u32 v11, v13, 3, v11
    v_lshlrev_b32 v14, 6, v12
    s_lshl_b32 {S_T0}, {S_QT}, 12
    s_lshl_b32 {S_T1}, {S_W}, 10
    s_add_u32 {S_T0}, {S_T0}, {S_T1}
    s_add_u32 {S_FK}, {S_T0}, {WS_ST2}
    v_lshlrev_b32 v16, 2, {V_LN}
    v_mov_b32 v17, {S_TAG}
    v_lshl_add_u32 v9, {S_T2}, 19, {V_L0}
    v_xor_b32 v7, 0x80000, v9
    v_add_u32 v8, 0x20000, v7
    v_add_u32 v10, 0x20000, v9
    v_and_b32 v18, 7, {V_LN}
    v_lshlrev_b32 v18, 2, v18
    v_and_b32 v15, 12, v18
{HKC}
    s_waitcnt lgkmcnt(0)
    v_readfirstlane_b32 {S_T1}, v27
    s_cmp_lg_u32 {S_T1}, 0
    s_cbranch_scc1 L_slow
L_slow_back:
    s_cmp_eq_u32 {S_D0}, 1
    s_cbranch_scc1 L_prod1
L_noprod:""")
    vm = VM(["~ps"])
    def vwait(tag):
        n = vm.wait([tag])
        return [] if n is None else [f"    s_waitcnt vmcnt({n})"]
    NPRE = OPT.get("npre", 3); NPO = OPT.get("npo", 0)
    e(a_reads(13) + a_reads(16) + a_reads(17))
    for i, t in enumerate(LG[:NPRE]):
        if i == OPT.get("pp", 2): e(f"    buffer_load_dword v19, v1, {SRD_WS}, {S_HK} offen sc1"); vm.add("p0")
        e(wo_dma(t)); vm.add(("G", t), 4)
    e(["    s_branch L_g3", "L_gback:"])
    e(f"""    s_waitcnt vmcnt({4*NPRE+1})
    s_mov_b32 exec_hi, 0
    buffer_store_dword v17, v16, {SRD_WS}, {S_FO} offen sc1
    s_mov_b64 exec, -1"""); vm.add("f")
    ST()
    e("    s_waitcnt lgkmcnt(0)")
    for t in LG[NPRE:NPRE+NPO]: e(wo_dma(t)); vm.add(("G", t), 4)
    e(vwait("p0") + [f"    v_cmp_ne_u32 vcc, {S_TAG}, v19", "    s_cmp_lg_u64 vcc, 0", "    s_cbranch_scc1 L_fp", "L_fp_ok:"])
    ST()
    for t_ in range(4): e(o_group(t_)); vm.add(("O", t_), 4)
    xl = [f"    buffer_load_dwordx2 v[{24+2*nb}:{25+2*nb}], v11, {SRD_X}, {S_XT} offen offset:{nb*32}" for nb in range(4)] + [f"    buffer_load_dwordx2 v[22:23], v14, {SRD_WS}, {S_FK} offen sc1"]
    gp = unpack(48, 24, 8) + [f"    v_sub_f32 v{48+j}, v{48+j}, v22" for j in range(16)] + pack(32, 48, 8) + unpack(48, 32, 8)
    gp += [f"    v_mul_f32 v{48+j}, v{48+j}, v23" for j in range(16)] + pack(32, 48, 8)
    f = [f"    v_mul_f32 v{192+j}, {f32(-LOG2E)}, v{48+j}" for j in range(16)] + [f"    v_exp_f32 v{192+j}, v{192+j}" for j in range(16)]
    f += [f"    v_add_f32 v{192+j}, 1.0, v{192+j}" for j in range(16)] + [f"    v_rcp_f32 v{192+j}, v{192+j}" for j in range(16)]
    f += [f"    v_mul_f32 v{48+j}, v{48+j}, v{192+j}" for j in range(16)] + pack(192, 48, 8) + unpack(48, 192, 8)
    OPT["silu"] = f
    gp += unpack(48, 32, 8) + f
    gp2 = unpack(240, 24, 8)
    MBS = OPT.get("mbs", 24); G3 = OPT.get("g3", 13); G4 = G3 + 5; C1 = G4 + 4; C2 = C1 + 2
    Z = []
    def wn(lines, w=(), gate=(), **kw):
        return [dep(lines, r=["VM"] + list(kw.pop("r", ())), w=["VM"] + list(w), rr=list(gate) + list(kw.pop("rr", ())), **kw)] if lines else []
    XL = [f"    buffer_load_dwordx4 {v4r(128+4*k)}, {V_L0}, {SRD_WS}, {S_HK if k < 4 else S_FO} offen offset:{(k&3)*1024} sc1" for k in range(6)]
    def sel(dst, tab):
        return [f"    s_mov_b32 {dst}, {tab[0]}"] + [[f"    s_cmp_eq_u32 {S_W}, {i}", f"    s_cselect_b32 {dst}, {tab[i]}, {dst}"] for i in range(1, 4)]
    def dump(slot, blk, tag):
        ad, off = ("v5", BOFF[blk] - HI) if BOFF[blk] >= HI else ("v4", BOFF[blk])
        return [dep(f"    ds_write_b128 {ad}, {v4r(ACC(nb,slot))} offset:{off + nb*1024}", w=[f"{tag}{blk}{nb}"]) for nb in range(4)]
    lastO = None; lastm = None
    gq = list(LG[NPRE + NPO:]); gst = {g_: -9 for g_ in LG[:NPRE + NPO]}; rq = list(LG); rdone = {}
    for t in range(32):
        gate = [lastm] if lastm else []
        w_ = vwait(("O", t))
        if w_: Z += wn(w_, w=[f"O{t}"], gate=gate); lastO = f"O{t}"
        if t in (1, 16): Z += stampnode(gate)
        if t == 12: Z += wn(vwait("p") + [f"    v_cmp_ne_u32 vcc, {S_TAG}, v19", "    s_nop 0", "    s_cmp_lg_u64 vcc, 0", "    s_cbranch_scc1 L_fq", "L_fq_ok:"], gate=gate, ww=["v19"], rr=[S_HK, "v1"])
        if t == 6:
            Z += wn(vwait("d") + [f"    v_cmp_ne_u32 vcc, {S_TAG}, v23", "    s_nop 0", "    s_cmp_lg_u64 vcc, 0", "    s_cbranch_scc1 L_gx", "L_gx_ok:"], gate=gate, ww=["v[22:31]"])
            Z += ["    v_and_b32 v23, 0xffff0000, v22", "    v_rcp_f32 v23, v23", "    v_lshlrev_b32 v22, 16, v22"] + gp; gp = []
        if rq and rq[0] in gst and gst[rq[0]] <= t - 5:
            g_ = rq.pop(0); w_ = vwait(("G", g_))
            if w_: Z += wn(w_, w=[f"GW{g_}"], gate=gate); lastO = f"GW{g_}"
            Z += a_reads(g_, r=[lastO], w=f"RD{g_}_"); rdone[g_] = t
        if gq and t % OPT.get("gper", 2) == 0 and (LG.index(gq[0]) < 6 or rdone.get(LG[LG.index(gq[0]) - 6], 99) < t):
            g_ = gq.pop(0); i_ = LG.index(g_)
            Z += wo_dma(g_, r=tags(f"RD{LG[i_-6]}_") if i_ >= 6 else ()); vm.add(("G", g_), 4); gst[g_] = t
        if t < 16 and EX[t] in LG: assert rdone[EX[t]] < t, (t, EX[t])
        if t == 16:
            Z += [f"    v_add_u32 v4, {S_LB}, {V_L0}", f"    v_add_u32 v5, {HI}, v4"]
            for sl_ in range(4): Z += dump(sl_, sl_, "XW")
        if t == 24:
            for sl_ in range(2): Z += [dict(x, bias=1500) for x in dump(sl_, 4 + sl_, "XW")]
        if t == MBS + 1:
            Z += wn(["    s_barrier"], w=["XBAR"], gate=gate, r=[f"XW{b_}{nb}" for b_ in range(6) for nb in range(4)])
            Z += sel(S_WGO, [BOFF[0], BOFF[1], BOFF[4], BOFF[5]]) + [f"    v_add_u32 v6, {S_WGO}, {V_L0}"]
            Z += [dep(f"    ds_read_b128 {v4r(192+16*j+4*nb)}, v6 offset:{j*SL + nb*1024}", r=["XBAR"], bias=1500) for j in range(4) for nb in range(4)]
            Z += [f"    v_add_f32 v{192+i}, v{192+i}, v{208+i}" for i in range(16)] + [f"    v_add_f32 v{224+i}, v{224+i}, v{240+i}" for i in range(16)]
            Z += [f"    v_add_f32 v{64+4*(i//3)+i%3}, v{192+i}, v{224+i}" for i in range(16)] + [f"    v_mov_b32 v{67+4*k}, v17" for k in range(6)]
            Z += [f"    s_mul_i32 {S_WGO}, s2, 24576", f"    s_mul_i32 {S_WB}, {S_W}, 6144", f"    s_add_u32 {S_WB}, {S_WB}, {WS_X}", f"    s_add_u32 {S_WGO}, {S_WGO}, {S_WB}",
                  f"    s_xor_b32 {S_HK}, s2, 1", f"    s_mul_i32 {S_HK}, {S_HK}, 24576", f"    s_add_u32 {S_HK}, {S_HK}, {S_WB}", f"    s_add_u32 {S_WB}, {S_WGO}, 4096", f"    s_add_u32 {S_FO}, {S_HK}, 4096"]
        if t == MBS + OPT.get("xsd", 2):
            Z += [f"    buffer_store_dwordx4 {v4r(64+4*k)}, {V_L0}, {SRD_WS}, {S_WGO if k < 4 else S_WB} offen offset:{(k&3)*1024} sc1" for k in range(6)]; vm.add("xs", 6)
            Z += gp2 + sel(S_WGO, [BOFF[2], BOFF[3], BOFF[6], BOFF[7]]) + [f"    v_add_u32 v6, {S_WGO}, {V_L0}"]; gp2 = []
        ok, orr = OB_(t)
        og = o_group(t + 4) if t + 4 < 32 else None
        first = True
        for f_ in range(4):
            if t < 16: ks, sl_, z_ = t, f_, t == 0
            else: ks, sl_, z_ = 2 * (t & 7) + (f_ >> 1), (0 if t < 24 else 2) + (f_ & 1), (t in (16, 24) and f_ < 2)
            k, r = BLK(EX[ks])
            for nb in range(4):
                m_ = mf(ACC(nb, sl_), r + 4 * nb, orr + 4 * f_, "0" if z_ else ACC(nb, sl_), ak=k, bk=ok)
                Z.append(dep(m_, r=[lastO]) if first else m_); first = False
            if f_ == 2: lastm = v4r(ACC(0, sl_))
            if og: Z += og[f_]; vm.add(("O", t + 4))
        if t == 1: Z += xl; vm.add("d", 5)
        if t == 7: Z += [f"    s_add_u32 {S_HK}, {S_HK}, {FB}", f"    buffer_load_dword v19, v1, {SRD_WS}, {S_HK} offen sc1"]; vm.add("p")
        if t == 31: Z += [dep(x, rr=gate) for x in XL]
        g2 = [lastm]
        TMP = [S_T0, S_T1, S_T2, "vcc", "v15", "s[60:63]"]
        if t == 0: Z += wn(vwait("~ps") + [f"    s_cmp_eq_u32 {S_D0}, 1", "    s_cbranch_scc1 L_psig", "L_psigb:"], ww=TMP[:1])
        if t == G3: Z += wn([f"    s_cmp_lg_u32 {S_T3}, 0", "    s_cbranch_scc1 L_g3b", "L_g3bk:"], gate=g2, ww=TMP + ["v[46:47]"]); vm.add("~mf")
        if t == G4: Z += wn(vwait("~mf") + [f"    s_cmp_lg_u32 {S_T3}, 0", "    s_cbranch_scc1 L_g4", "L_g4back:"], gate=g2, ww=TMP + ["v20", "v[46:47]", "v[192:239]"]); vm.add("~pl")
        if t == C1: OPT["plw"] = vm.peek(["~pl"]); Z += wn([f"    s_cmp_lg_u32 {S_T3}, 0", "    s_cbranch_scc1 L_c1", "L_c1_back:"], gate=g2, ww=TMP + ["v20", "v[192:239]"])
        if t == C2:
            Z += wn([f"    s_cmp_lg_u32 {S_OWN}, 0", "    s_cbranch_scc1 L_cons", "L_cons_back:"], gate=g2, ww=TMP + ["v[20:21]", "v[192:223]", "v[32:39]", "v[48:63]"])
    assert not gq and not rq
    import sched as _s2
    ov = _s2.VMC; _s2.VMC = OPT.get("gvmc", 56)
    zz = schedule(Z, verbose="gemm"); _s2.VMC = ov
    if OPT.get("znow"): zz = [x for x in zz if "vmcnt" not in x]
    if OPT.get("znobar"): zz = [x for x in zz if "s_barrier" not in x]
    if OPT.get("znodma"): zz = [x for x in zz if " lds" not in x]
    if OPT.get("znoo"): zz = [x for x in zz if not ("buffer_load_dwordx4" in x and "s40" in x)]
    e(zz)
    assert not gp and not gp2
    OPT["XL"] = XL
    ST()
    e(dump(2, 6, "F") + dump(3, 7, "F"))
    e(srd(12, POUT, "0x200000"))
    e(["    v_and_b32 v19, 1, v13", "    v_lshrrev_b32 v20, 1, v13", "    v_lshl_add_u32 v19, v19, 1, v20", "    v_lshlrev_b32 v19, 4, v19", "    v_lshl_add_u32 v19, v12, 10, v19"])
    OPT["xc"] = [f"    v_xor_b32 v{131+4*k}, {S_TAG}, v{131+4*k}" for k in range(6)] + ["    v_or3_b32 v131, v131, v135, v139", "    v_or3_b32 v143, v143, v147, v151", "    v_or_b32 v131, v131, v143", "    v_cmp_ne_u32 vcc, 0, v131"]
    e("    s_waitcnt lgkmcnt(0)\n    s_barrier")
    ST()
    e([f"    ds_read_b128 {v4r(64+16*j+4*nb)}, v6 offset:{j*SL + nb*1024}" for j in range(4) for nb in range(4)])
    e(["    s_waitcnt vmcnt(0)"] + OPT["xc"] + ["    s_cmp_lg_u64 vcc, 0", "    s_cbranch_scc1 L_xx", "L_xx_ok:"])
    e("    s_waitcnt lgkmcnt(8)")
    e([f"    v_pk_add_f32 v[{64+j}:{65+j}], v[{64+j}:{65+j}], v[{80+j}:{81+j}]" for j in range(0, 16, 2)])
    e([f"    v_add_f32 v{64+i}, v{64+i}, v{128+4*(i//3)+i%3}" for i in range(16)])
    e("    s_waitcnt lgkmcnt(0)")
    e([f"    v_pk_add_f32 v[{96+j}:{97+j}], v[{96+j}:{97+j}], v[{112+j}:{113+j}]" for j in range(0, 16, 2)])
    e([f"    v_pk_add_f32 v[{64+j}:{65+j}], v[{64+j}:{65+j}], v[{96+j}:{97+j}]" for j in range(0, 16, 2)])
    e(pack(80, 64, 8) + unpack(64, 80, 8) + [f"    v_pk_mul_f32 v[{64+j}:{65+j}], v[{64+j}:{65+j}], v[{48+j}:{49+j}]" for j in range(0, 16, 2)] + pack(80, 64, 8) + unpack(64, 80, 8))
    e([f"    v_pk_add_f32 v[{64+j}:{65+j}], v[{64+j}:{65+j}], v[{240+j}:{241+j}]" for j in range(0, 16, 2)] + pack(80, 64, 8))
    if OPT.get("stfin"): ST()
    if OPT.get("st4"):
        e([f"    v_permlane16_swap_b32 v{80+4*h_+i}, v{82+4*h_+i}" for h_ in range(2) for i in range(2)])
        e([f"    buffer_store_dwordx4 {v4r(80+4*h_)}, v19, {SRD_OUT}, {S_XT} offen offset:{h_*64}" for h_ in range(2)])
    else:
        e([f"    buffer_store_dwordx2 v[{80+2*nb}:{81+2*nb}], v11, {SRD_OUT}, {S_XT} offen offset:{nb*32}" for nb in range(4)])
    if stamp:
        e("    s_waitcnt vmcnt(0)")
        ST()
        e(["    s_memrealtime s[90:91]", "    s_waitcnt lgkmcnt(0)", "    v_writelane_b32 v0, s90, 31",
           f"    s_lshl_b32 {S_T0}, s2, 10", f"    s_lshl_b32 {S_T1}, {S_W}, 8", f"    s_add_u32 {S_T0}, {S_T0}, {S_T1}", f"    s_add_u32 {S_T0}, {S_T0}, 0x1080000",
           f"    v_lshlrev_b32 v1, 2, {V_LN}", f"    buffer_store_dword v0, v1, {SRD_WS}, {S_T0} offen"])
    if OPT.get("dbgst"):
        sel = OPT.get("dbgsel", [3, 5, 8, 9, 10, 12, 16, 18])
        e([f"    s_cmp_lg_u32 s2, {OPT['dbgst']}", "    s_cbranch_scc1 L_end", f"    s_cmp_lg_u32 {S_W}, 0", "    s_cbranch_scc1 L_end", "    v_readlane_b32 s60, v0, 30"])
        for i, k in enumerate(sel):
            e([f"    v_readlane_b32 s61, v0, {32+k}", "    s_nop 3", "    s_sub_u32 s61, s61, s60", "    v_mov_b32 v1, s61", "    v_mov_b32 v4, 0", "    s_mov_b64 exec, 1",
               f"    global_store_dword v4, v1, {S_DBG} offset:{32+4*i}", "    s_mov_b64 exec, -1"])
    if OPT.get("mag") is not None:
        k = OPT["mag"]
        e(([] if OPT.get("magall") else [f"    s_cmp_lg_u32 s2, {OPT.get('magwg', 100)}", "    s_cbranch_scc1 L_end", f"    s_cmp_lg_u32 {S_W}, {OPT.get('magw', 0)}", "    s_cbranch_scc1 L_end"]) + ["    v_readlane_b32 s60, v0, 30",
           f"    v_readlane_b32 s61, v0, {32+k if k >= 0 else 30}", "    s_nop 3", "    s_sub_u32 s61, s61, s60", "    s_lshl_b32 s61, s61, 2", "    s_add_u32 s61, s61, 6000",
           "L_mag:", "    s_sleep 8", "    s_memrealtime s[90:91]", "    s_waitcnt lgkmcnt(0)", "    s_sub_u32 s90, s90, s60", "    s_cmp_lt_u32 s90, s61", "    s_cbranch_scc1 L_mag"])
    e("L_end:\n    s_endpgm")
    e(["L_sp1x:", f"    s_mov_b32 {S_SP}, 0", "L_sp1x1:", "    s_sleep 4"] + [f"    buffer_load_dwordx2 v[{STQ(q)}:{STQ(q)+1}], v43, {SRD_WS}, {S_FK} offen offset:{q*1024} sc1" for q in range(4)] + ["    s_waitcnt vmcnt(0)"] + OPT["tchk"] + ["    s_cmp_eq_u64 vcc, 0", "    s_cbranch_scc1 L_sp1_ok",
       f"    s_add_u32 {S_SP}, {S_SP}, 1", f"    s_cmp_lt_u32 {S_SP}, {OPT['spin']}", "    s_cbranch_scc1 L_sp1x1", "    s_branch L_sp1_ok"])
    if OPT.get("csh"):
        e(["L_csx:", f"    s_mov_b32 {S_SP}, 0", "L_csx1:", "    s_sleep 4"] + OPT["csl"] + ["    s_waitcnt vmcnt(0)"] + OPT["ck"] + ["    s_cmp_eq_u64 vcc, 0", "    s_cbranch_scc1 L_cs_ok",
           f"    s_add_u32 {S_SP}, {S_SP}, 1", f"    s_cmp_lt_u32 {S_SP}, {OPT['spin']}", "    s_cbranch_scc1 L_csx1", "    s_branch L_cs_ok"])
    e(["L_fq:", f"    s_mov_b32 {S_SP}, 0", "L_fq1:", f"    buffer_load_dword v19, v1, {SRD_WS}, {S_HK} offen sc1", "    s_waitcnt vmcnt(0)",
       f"    v_cmp_ne_u32 vcc, {S_TAG}, v19", "    s_cmp_eq_u64 vcc, 0", "    s_cbranch_scc1 L_fq_ok", f"    s_sleep {OPT.get('slp', 6)}",
       f"    s_add_u32 {S_SP}, {S_SP}, 1", f"    s_cmp_lt_u32 {S_SP}, {OPT['spin']}", "    s_cbranch_scc1 L_fq1", "    s_branch L_fq_ok"])
    e(["L_xx:", f"    s_mov_b32 {S_SP}, 0", "L_xx1:", "    s_sleep 4"] + OPT["XL"] + ["    s_waitcnt vmcnt(0)"] + OPT["xc"] + ["    s_cmp_eq_u64 vcc, 0", "    s_cbranch_scc1 L_xx_ok",
       f"    s_add_u32 {S_SP}, {S_SP}, 1", f"    s_cmp_lt_u32 {S_SP}, {OPT['spin']}", "    s_cbranch_scc1 L_xx1", "    s_branch L_xx_ok"])
    e(["L_gx:", f"    s_mov_b32 {S_SP}, 0", "L_gx1:", "    s_sleep 4"] + [f"    buffer_load_dwordx2 v[22:23], v14, {SRD_WS}, {S_FK} offen sc1", "    s_waitcnt vmcnt(0)", f"    v_cmp_ne_u32 vcc, {S_TAG}, v23"] + ["    s_cmp_eq_u64 vcc, 0", "    s_cbranch_scc1 L_gx_ok",
       f"    s_add_u32 {S_SP}, {S_SP}, 1", f"    s_cmp_lt_u32 {S_SP}, {OPT['spin']}", "    s_cbranch_scc1 L_gx1", "    s_branch L_gx_ok"])
    e(["L_px:", f"    s_mov_b32 {S_SP}, 0", "L_px1:", "    s_sleep 4"] + [f"    buffer_load_dwordx2 v[68:69], v66, {SRD_WS}, {S_T1} offen sc1", "    s_waitcnt vmcnt(0)", f"    v_cmp_ne_u32 vcc, {S_TAG}, v69"] + ["    s_cmp_eq_u64 vcc, 0", "    s_cbranch_scc1 L_px_ok",
       f"    s_add_u32 {S_SP}, {S_SP}, 1", f"    s_cmp_lt_u32 {S_SP}, {OPT['spin']}", "    s_cbranch_scc1 L_px1", "    s_branch L_px_ok"])
    e(["L_slow:", f"    s_cmp_lg_u32 {S_PASS}, 0", "    s_cbranch_scc1 L_slow_back", "    s_waitcnt vmcnt(0) lgkmcnt(0)",
       "    v_and_b32 v20, 1, v13", "    v_lshrrev_b32 v21, 1, v13", "    v_lshl_add_u32 v20, v20, 1, v21", "    v_lshlrev_b32 v20, 4, v20", "    v_lshl_add_u32 v20, v12, 8, v20",
       f"    s_mov_b32 {S_T0}, 0"] + [f"    v_mov_b32 v{16+q}, 0xff800000" for q in range(4)] + ["L_sl1:"])
    e([f"    buffer_load_dwordx4 {v4r(64+4*s_)}, v20, {SRD_K}, {S_T0} offen offset:{s_*64}" for s_ in range(4)] + ["    s_waitcnt vmcnt(0)"])
    for q in range(4):
        for s_ in range(4): e(mf(80 + 4 * q, 64 + 4 * s_, QF(q, s_), "0" if s_ == 0 else 80 + 4 * q, ak="v"))
    e("    s_nop 7")
    for q in range(4): e([f"    v_max3_f32 v{16+q}, v{16+q}, v{80+4*q}, v{81+4*q}", f"    v_max3_f32 v{16+q}, v{16+q}, v{82+4*q}, v{83+4*q}"])
    e([f"    s_add_u32 {S_T0}, {S_T0}, 4096", f"    s_cmp_lt_u32 {S_T0}, 0x20000", "    s_cbranch_scc1 L_sl1"])
    for sw in ("v_permlane16_swap_b32", "v_permlane32_swap_b32"):
        e([f"    v_mov_b32 v{24+q}, v{16+q}" for q in range(4)] + [f"    {sw} v{16+q}, v{24+q}" for q in range(4)] + [f"    v_max_f32 v{16+q}, v{16+q}, v{24+q}" for q in range(4)])
    e(["    v_lshlrev_b32 v20, 4, v12", f"    v_lshl_add_u32 v20, {S_W}, 8, v20", f"    v_add_u32 v20, {MF}, v20", "    ds_write_b128 v20, v[16:19]",
       f"    v_lshl_add_u32 v0, {S_W}, 6, {V_LN}", f"    s_mov_b32 {S_PASS}, 1", "    s_waitcnt lgkmcnt(0)", "    s_barrier", "    s_branch L_restart"])
    e(["L_fp:", f"    s_mov_b32 {S_SP}, 0", "L_fp1:", f"    buffer_load_dword v19, v1, {SRD_WS}, {S_HK} offen sc1", "    s_waitcnt vmcnt(0)",
       f"    v_cmp_ne_u32 vcc, {S_TAG}, v19", "    s_cmp_eq_u64 vcc, 0", "    s_cbranch_scc1 L_fp2", f"    s_sleep {OPT.get('slp', 6)}",
       f"    s_add_u32 {S_SP}, {S_SP}, 1", f"    s_cmp_lt_u32 {S_SP}, {OPT['spin']}", "    s_cbranch_scc1 L_fp1", "L_fp2:"])
    e("    s_branch L_fp_ok")
    e(["L_keys:", f"    s_mov_b32 {S_SP}, 0", "L_ky1:"] + merge8(V_TD) + [f"    s_cmp_lg_u32 {S_T0}, 0", "    s_cbranch_scc1 L_ky2",
       "    s_sleep 8", f"    global_load_dword {V_TD}, v11, {S_DBG} offset:128 sc1", "    s_waitcnt vmcnt(0)",
       f"    s_add_u32 {S_SP}, {S_SP}, 1", f"    s_cmp_lt_u32 {S_SP}, {OPT['spin']}", "    s_cbranch_scc1 L_ky1", "L_ky2:", f"    v_mov_b32 v64, {S_K0}", f"    v_mov_b32 v65, {S_K1}"])
    e(srd(4, PX, "0x200000"))
    e(f"""    v_cmp_gt_u32 vcc, 512, {V_L0}
    v_cndmask_b32 v66, v65, v64, vcc
    v_not_b32 v66, v66
    v_and_b32 v66, 2047, v66                   ; row
    v_and_b32 v67, 0x1f0, {V_L0}
    v_lshlrev_b32 v67, 1, v67
    v_lshl_add_u32 v67, v66, 10, v67
    v_lshlrev_b32 v66, 6, v66
    s_mov_b32 s60, {WS_ST2}
    buffer_load_dwordx4 v[80:83], v67, {SRD_X}, 0 offen
    buffer_load_dwordx4 v[84:87], v67, {SRD_X}, 0 offen offset:16
    buffer_load_dwordx2 v[68:69], v66, {SRD_WS}, s60 offen sc1
    s_branch L_nokeys""")
    TV = [3, 4, 7, 8, 9, 10]
    sv = [f"    v_accvgpr_write_b32 a{224+i}, v{r}" for i, r in enumerate(TV)]
    rs = [f"    v_accvgpr_read_b32 v{r}, a{224+i}" for i, r in enumerate(TV)]
    kl = [f"    s_lshl_b32 s60, {S_W}, 15", f"    s_add_u32 s60, s60, {WS_ST2+56}"]
    for j in range(8): kl += [f"    buffer_load_dword a{192+j}, v4, {SRD_WS}, s60 offen sc1", "    s_add_u32 s60, s60, 4096"]
    e(["L_hk2:"] + sv[1:2] + lane("v4") + ["    v_lshlrev_b32 v4, 6, v4"] + kl + rs[1:2] + ["    s_nop 1", "    s_branch L_hk2b"])
    e(["L_hk3:", f"    s_waitcnt vmcnt({OPT['hv3']})"] + sv + [f"    s_mov_b32 {S_SP}, 0", "    s_mov_b32 s61, 0xffff", "L_hk31:"] + lane("v4") +
      [f"    v_lshl_add_u32 v10, {S_W}, 9, v4", "    v_sub_u32 v10, 0xffff, v10", "    v_mov_b32 v8, 0", "    v_mov_b32 v9, 0", "    v_mov_b32 v7, 0"])
    for j in range(8):
        e([f"    v_accvgpr_read_b32 v3, a{192+j}", f"    v_subrev_u32 v4, {64*j}, v10", f"    v_xor_b32 v11, {S_TAG}, v3", "    v_bfi_b32 v3, s61, v4, v3", "    v_or_b32 v7, v7, v11",
           "    v_med3_u32 v9, v8, v9, v3", "    v_max_u32 v8, v8, v3"])
    e(["    v_and_b32 v7, 0xffff, v7", "    v_cmp_ne_u32 vcc, 0, v7", "    s_cmp_eq_u64 vcc, 0", "    s_cbranch_scc1 L_hk32", "    s_sleep 8"] + lane("v4") + ["    v_lshlrev_b32 v4, 6, v4"] + kl +
      ["    s_waitcnt vmcnt(0)", f"    s_add_u32 {S_SP}, {S_SP}, 1", f"    s_cmp_lt_u32 {S_SP}, {OPT['spin']}", "    s_cbranch_scc1 L_hk31", "L_hk32:"])
    comb = ["    v_min_u32 v7, v8, v3", "    v_max_u32 v8, v8, v3", "    v_max3_u32 v9, v9, v4, v7"]
    for md in ("quad_perm:[1,0,3,2]", "quad_perm:[2,3,0,1]", "row_half_mirror", "row_mirror"):
        e([f"    v_mov_b32_dpp v3, v8 {md} row_mask:0xf bank_mask:0xf", f"    v_mov_b32_dpp v4, v9 {md} row_mask:0xf bank_mask:0xf"] + comb)
    for sw in ("v_permlane16_swap_b32", "v_permlane32_swap_b32"):
        e(["    v_mov_b32 v3, v8", "    v_mov_b32 v4, v9", f"    {sw} v8, v3", f"    {sw} v9, v4"] + comb)
    e(["    s_mov_b64 exec, 1", f"    s_lshl_b32 s60, {S_W}, 3", "    v_mov_b32 v10, s60", f"    global_store_dwordx2 v10, v[8:9], {S_DBG} offset:128 sc1", "    s_mov_b64 exec, -1", "    s_nop 3"] + rs + ["    s_nop 1", "    s_branch L_hk3b"])
    npr = 0 if OPT.get('noprod') else NPROD
    e(["L_g3:", f"    s_mov_b32 {S_SP}, 0", "L_g3c:"] + merge8("v29") + [f"    s_cmp_lg_u32 {S_T0}, 0", "    s_cbranch_scc1 L_g3ok",
       "    s_sleep 16", f"    global_load_dword v29, v18, {S_DBG} offset:128 sc1", "    s_waitcnt vmcnt(0)",
       f"    s_add_u32 {S_SP}, {S_SP}, 1", f"    s_cmp_lt_u32 {S_SP}, {OPT['spin']}", "    s_cbranch_scc1 L_g3c", "L_g3ok:",
       f"    s_not_b32 {S_I0}, {S_K0}", f"    s_and_b32 {S_I0}, {S_I0}, 2047", f"    s_not_b32 {S_I1}, {S_K1}", f"    s_and_b32 {S_I1}, {S_I1}, 2047",
       f"    s_lshl_b32 {S_T0}, {S_QT}, 2", f"    s_add_u32 {S_T0}, {S_T0}, {S_W}", f"    s_lshr_b32 {S_T1}, {S_I0}, 4", f"    s_lshr_b32 {S_T2}, {S_I1}, 4",
       f"    s_cmp_eq_u32 {S_T0}, {S_T1}", f"    s_cselect_b32 {S_OWN}, 1, 0", f"    s_cmp_eq_u32 {S_T0}, {S_T2}", f"    s_cselect_b32 {S_T0}, 2, 0", f"    s_or_b32 {S_OWN}, {S_OWN}, {S_T0}",
       f"    s_lshr_b32 {S_T1}, {S_T1}, 2", f"    s_lshr_b32 {S_T2}, {S_T2}, 2",
       f"    s_cmp_eq_u32 {S_QT}, {S_T1}", f"    s_cselect_b32 {S_T3}, 1, 0", f"    s_cmp_eq_u32 {S_QT}, {S_T2}", f"    s_cselect_b32 {S_T1}, 2, 0", f"    s_or_b32 {S_T3}, {S_T3}, {S_T1}",
       "    s_branch L_gback", "L_g3b:", f"    v_min_u32 v15, {NPROD//2-1}, {V_LN}", "    v_lshlrev_b32 v15, 8, v15", f"    v_add_u32 v15, {WS_MF2}, v15",
       f"    buffer_load_dword v46, v15, {SRD_WS}, 0 offen sc1", f"    buffer_load_dword v47, v15, {SRD_WS}, 0 offen offset:128 sc1", "    s_branch L_g3bk"])
    e(["L_g4:", f"    s_mov_b32 {S_SP}, 0", "L_g4c:", f"    v_xor_b32 v46, {S_TAG}, v46", f"    v_xor_b32 v47, {S_TAG}, v47", "    v_or_b32 v46, v46, v47", "    v_cmp_ne_u32 vcc, 0, v46",
       "    s_cmp_eq_u64 vcc, 0", "    s_cbranch_scc1 L_g4ok", "    s_sleep 4", f"    buffer_load_dword v46, v15, {SRD_WS}, 0 offen sc1", f"    buffer_load_dword v47, v15, {SRD_WS}, 0 offen offset:128 sc1", "    s_waitcnt vmcnt(0)",
       f"    s_add_u32 {S_SP}, {S_SP}, 1", f"    s_cmp_lt_u32 {S_SP}, {OPT['spin']}", "    s_cbranch_scc1 L_g4c", "L_g4ok:"])
    e(srd(16, PWS, NPROD * 4096, WS_Y))
    e(["    v_lshlrev_b32 v15, 12, v13", "    v_lshl_add_u32 v15, v12, 4, v15", f"    s_lshl_b32 {S_T0}, {S_NT}, 8", f"    s_lshl_b32 {S_T1}, {S_W}, 14", f"    s_add_u32 {S_T0}, {S_T0}, {S_T1}", f"    v_add_u32 v15, {S_T0}, v15"])
    for tok in range(2):
        e([f"    s_bitcmp1_b32 {S_T3}, {tok}", f"    s_cbranch_scc0 L_pl{tok}", "    v_mov_b32 v20, v15"])
        for k in range(6): e([f"    buffer_load_dwordx4 {v4r(192+24*tok+4*k)}, v20, {SRD_Y}, 0 offen offset:{tok*2048} sc1", "    v_add_u32 v20, 0x10000, v20"])
        e(f"L_pl{tok}:")
    e("    s_branch L_g4back")
    e(["L_c1:"] + ([] if OPT["plw"] is None else [f"    s_waitcnt vmcnt({OPT['plw']})"]) + [f"    s_lshl_b32 {S_T0}, {S_W}, 8", f"    s_add_u32 {S_T0}, {S_T0}, {FV}", f"    v_lshl_add_u32 v20, v12, 4, {S_T0}"])
    for tok in range(2):
        b_ = 192 + 24 * tok
        e([f"    s_bitcmp1_b32 {S_T3}, {tok}", f"    s_cbranch_scc0 L_c1{tok}"])
        for k in range(1, 6):
            for r in (0, 2): e(f"    v_pk_add_f32 v[{b_+r}:{b_+r+1}], v[{b_+r}:{b_+r+1}], v[{b_+4*k+r}:{b_+4*k+r+1}]")
        for sw in ("v_permlane16_swap_b32", "v_permlane32_swap_b32"):
            e([f"    v_mov_b32 v{b_+4+r}, v{b_+r}" for r in range(4)] + [f"    {sw} v{b_+r}, v{b_+4+r}" for r in range(4)] + [f"    v_add_f32 v{b_+r}, v{b_+r}, v{b_+4+r}" for r in range(4)])
        e([f"    ds_write_b128 v20, {v4r(b_)} offset:{tok*1024}", f"L_c1{tok}:"])
    e([f"    s_lshl_b32 {S_T0}, {S_W}, 2", f"    s_add_u32 {S_T0}, {S_T0}, {FV+2048}", f"    v_mov_b32 v20, {S_T0}", "    s_waitcnt lgkmcnt(0)", "    ds_write_b32 v20, v17", "    s_branch L_c1_back"])
    e(["L_cons:", f"    s_mov_b32 {S_SP}, 0", f"    v_and_b32 v20, 12, v18", f"    v_add_u32 v20, {FV+2048}, v20", "L_cw:", "    ds_read_b32 v21, v20", "    s_waitcnt lgkmcnt(0)",
       f"    v_cmp_ne_u32 vcc, {S_TAG}, v21", "    s_cmp_eq_u64 vcc, 0", "    s_cbranch_scc1 L_cn", "    s_sleep 1", f"    s_add_u32 {S_SP}, {S_SP}, 1", f"    s_cmp_lt_u32 {S_SP}, {OPT['spin']*8}", "    s_cbranch_scc1 L_cw", "L_cn:"])
    e(f"""    s_bitcmp1_b32 {S_OWN}, 0
    s_cselect_b32 {S_T0}, {S_K0}, {S_K1}
    s_cselect_b32 s60, {S_I0}, {S_I1}
    s_cselect_b32 s61, 0, 1024
    s_add_u32 s61, s61, {FV}
    v_lshl_add_u32 v20, v12, 4, s61
    ds_read_b128 v[192:195], v20
    ds_read_b128 v[196:199], v20 offset:256
    ds_read_b128 v[200:203], v20 offset:512
    ds_read_b128 v[204:207], v20 offset:768
    s_and_b32 s60, s60, 15
    s_and_b32 {S_T0}, {S_T0}, 0xffff0000
    s_xor_b32 {S_T1}, {S_T0}, 0x80000000
    s_xor_b32 {S_T2}, {S_T0}, 0xffff0000
    s_bitcmp1_b32 {S_T0}, 31
    s_cselect_b32 {S_T0}, {S_T1}, {S_T2}
    v_mov_b32 v15, {S_T0}""")
    e(sigmoid("v15", "v15", "v21") + bfround("v15", "v15") + ["    v_lshl_add_u32 v21, v13, 4, s61", "    s_waitcnt lgkmcnt(0)"])
    for k in range(1, 4): e([f"    v_add_f32 v{192+r}, v{192+r}, v{192+4*k+r}" for r in range(4)])
    for r in range(4): e(bfround(f"v{192+r}", f"v{192+r}"))
    e([f"    v_mul_f32 v{192+r}, v{192+r}, v15" for r in range(4)])
    for r in range(4): e(bfround(f"v{192+r}", f"v{192+r}"))
    e(["    ds_write_b128 v20, v[192:195]", "    s_waitcnt lgkmcnt(0)"])
    e([f"    ds_read_b128 {v4r(208+4*nb)}, v21 offset:{nb*64}" for nb in range(4)] + unpack(48, 32, 8) + ["    v_cmp_eq_u32 vcc, s60, v12", "    s_waitcnt lgkmcnt(0)"])
    e([f"    v_cndmask_b32 v{208+j}, 0, v{208+j}, vcc" for j in range(16)] + [f"    v_add_f32 v{48+j}, v{48+j}, v{208+j}" for j in range(16)] + pack(32, 48, 8))
    e([f"    s_cmp_eq_u32 {S_OWN}, 3", f"    s_mov_b32 {S_OWN}, 2", "    s_cbranch_scc1 L_cn"])
    e(unpack(48, 32, 8) + OPT["silu"] + ["    s_branch L_cons_back"])
    import sched as _sc
    old = dict(_sc.LDSC); _sc.LDSC.update({128: 8, 64: 5, 'w': 16})
    e("L_prod1:")
    e(f"""    v_bfe_u32 v56, {V_LN}, 2, 2
    v_and_b32 v57, 3, {V_LN}
    v_lshl_add_u32 v52, v13, 3, v56
    v_lshlrev_b32 v52, 5, v52
    v_lshl_add_u32 v52, v57, 3, v52
    v_add_u32 v52, {GA}, v52
    s_waitcnt vmcnt({OPT['pw']})""")
    e([f"    s_mov_b32 {S_T1}, {WS_ST2}", f"    v_cmp_ne_u32 vcc, {S_TAG}, v69", "    s_cmp_lg_u64 vcc, 0", "    s_cbranch_scc1 L_px", "L_px_ok:"])
    pm = ["    v_and_b32 v69, 0xffff0000, v68", "    v_rcp_f32 v69, v69", "    v_lshlrev_b32 v68, 16, v68"]
    pm += flat([f"""    v_and_b32 v37, 1, {V_LN}
    v_lshlrev_b32 v50, 5, {V_LN}
    v_add_u32 v50, {XN}, v50
    v_lshlrev_b32 v51, 10, v37
    v_lshl_add_u32 v51, v13, 4, v51
    v_add_u32 v51, {XN}, v51
    v_lshl_add_u32 v53, v13, 2, v56
    v_mul_u32_u24 v53, {MS}, v53
    v_lshl_add_u32 v53, v57, 3, v53
    v_add_u32 v53, {DA}, v53
    v_lshlrev_b32 v54, 11, v37
    v_lshl_add_u32 v54, v13, 4, v54
    v_lshrrev_b32 v55, 1, v12
    v_lshl_add_u32 v54, v55, 6, v54
    s_lshl_b32 {S_T0}, {S_FS}, 12
    v_add_u32 v54, {S_T0}, v54"""])
    pm += unpack(112, 80, 8) + [f"    v_sub_f32 v{112+j}, v{112+j}, v68" for j in range(16)] + pack(96, 112, 8) + unpack(112, 96, 8)
    pm += [f"    v_mul_f32 v{112+j}, v{112+j}, v69" for j in range(16)] + pack(96, 112, 8)
    pm += [dep("    ds_write_b128 v50, v[96:99]", w=["XW0"]), dep("    ds_write_b128 v50, v[100:103] offset:16", w=["XW1"])]
    pm += [dep(f"    ds_read_b128 {a4r(4*ks)}, v51 offset:{ks*64}", r=["XW0", "XW1"]) for ks in range(16)]
    for ks in range(16):
        g_, u_ = 128 + 8 * ks, 132 + 8 * ks
        for p in range(2):
            pm.append(f"    ds_read_b64_tr_b16 v[{g_+2*p}:{g_+2*p+1}], v52 offset:{ks*MS + p*128}")
            pm.append(f"    ds_read_b64_tr_b16 v[{u_+2*p}:{u_+2*p+1}], v52 offset:{UA - GA + ks*MS + p*128}")
        pm.append(mf(40, g_, 4 * ks, "0" if ks == 0 else 40, ak="v", bk="a"))
        pm.append(mf(44, u_, 4 * ks, "0" if ks == 0 else 44, ak="v", bk="a"))
    pm += [f"    ds_read_b64_tr_b16 v[{128+2*nb}:{129+2*nb}], v53 offset:{nb*32}" for nb in range(32)]
    e(schedule(pm, verbose="prod1"))
    e(["    s_waitcnt vmcnt(0)", f"    s_mov_b32 exec_lo, {FX}", "    s_mov_b32 exec_hi, 0", f"    buffer_store_dword v17, v16, {SRD_WS}, {S_FO} offen sc1", "    s_mov_b64 exec, -1"])
    e(srd(16, PWS, NPROD * 4096, WS_Y))
    pm = []
    for r in range(8): pm += bfround(f"v{40+r}", f"v{40+r}")
    for r in range(4): pm += sigmoid(f"v{58+r}", f"v{40+r}", f"v{58+r}")
    pm += [f"    v_mul_f32 v{40+r}, v{40+r}, v{58+r}" for r in range(4)]
    for r in range(4): pm += bfround(f"v{40+r}", f"v{40+r}")
    pm += [f"    v_mul_f32 v{40+r}, v{40+r}, v{44+r}" for r in range(4)]
    pm += ["    v_cvt_pk_bf16_f32 v62, v40, v41", "    v_cvt_pk_bf16_f32 v63, v42, v43"]
    for m in range(8):
        pm += [f"    v_cmp_eq_u32 vcc, {m}, v55", f"    v_cndmask_b32 v{96+2*m}, 0, v62, vcc", f"    v_cndmask_b32 v{97+2*m}, 0, v63, vcc"]
        if m & 1:
            for c in range(4):
                pm.append(mf(64 + 4 * c, 128 + 2 * (8 * c + m - 1), 96 + 2 * (m - 1), "0" if m == 1 else 64 + 4 * c, ak="v", bk="v"))
    e("    s_waitcnt lgkmcnt(0)")
    e(schedule(pm, verbose="prod2"))
    for c in range(4): e(f"    buffer_store_dwordx4 {v4r(64+4*c)}, v54, {SRD_Y}, 0 offen offset:{c*512} sc1")
    e(["    s_nop 1", "    s_branch L_noprod"])
    _sc.LDSC.update(old)
    e(["L_psig:", "    s_mov_b32 exec_hi, 0", f"    s_lshl_b32 {S_T0}, {S_FS}, 7", f"    s_add_u32 {S_T0}, {S_T0}, {WS_MF2}", f"    buffer_store_dword v17, v16, {SRD_WS}, {S_T0} offen sc1", "    s_cmp_eq_u32 s2, 0", f"    s_cselect_b32 {S_T0}, {WS_E}, {S_T0}",
       f"    buffer_store_dword v17, v16, {SRD_WS}, {S_T0} offen sc1", "    s_mov_b64 exec, -1", "    s_branch L_psigb"])
    lines, n = fix_hazards(o)
    print("nops", n, "lines", len(lines))
    for nm in ():
        a = lines.index(f"L_{nm}:"); b = [i for i, l in enumerate(lines) if f"s_cbranch_scc1 L_{nm}" in l][0]
        fix_hazards(lines[a:b+1] * 2, insert=False, tag=nm)
        print(nm, "nops:", sum(1 for l in lines[a:b+1] if "; hz" in l), "instr", b - a, "waits", sum(1 for l in lines[a:b+1] if "s_waitcnt" in l))
    kd = f""".amdhsa_kernel {name}
  .amdhsa_next_free_vgpr 512
  .amdhsa_next_free_sgpr 102
  .amdhsa_accum_offset 256
  .amdhsa_group_segment_fixed_size 0
  .amdhsa_kernarg_size 104
  .amdhsa_user_sgpr_count 2
  .amdhsa_user_sgpr_kernarg_segment_ptr 1
  .amdhsa_system_sgpr_workgroup_id_x 1
.end_amdhsa_kernel"""
    return "\n".join(lines), kd

DOC = """; One persistent kernel, 256 workgroups (one per CU) x 4 waves, generated by the author's own scheduler scripts.
;  2. Q^T = Wq_h^T x^T on raw x (mean folded in through a column-sum correction step, rstd*scale applied in fp32).
;     a run-time check of the row sums falls back to a pass with the exact row max (L_slow).
"""
NAME = "recurrent_scan__sliding_block_cached__moe_arch_mod__prompt"
def build(path, aslist=False, **opt):
    OPT.update(opt)
    import sched as _s
    _s.VMC = OPT.get("vmc", 76)
    hdr = open(f"cdna_kernels/{NAME}.s.ref").read().split("\n")
    hdr = [l for l in hdr if l.startswith(";") and "@launch" not in l and "Override" not in l and "grid=ceil" not in l]
    b, kd = gen_full(NAME + "_kernel")
    kn = f"kernel={NAME}_kernel " if aslist else ""
    s = "\n".join(hdr) + f"\n; @launch {kn}grid=(256,1,1) block=(256,1,1) lds={LDS_TOTAL}\n" \
        '.amdgcn_target "amdgcn-amd-amdhsa--gfx950"\n' + DOC + '.text\n' + b + "\n.fill 16, 4, 0xbf800000\nL_code_end:\n    s_endpgm\n" + '.section .rodata,"a"\n.p2align 6\n' + kd + "\n"
    open(path, "w").write(s)

if __name__ == "__main__":
    import json
    opts = json.loads(sys.argv[2]) if len(sys.argv) > 2 else {}
    tag = sys.argv[1] if len(sys.argv) > 1 else "f"
    build(f"gen/{tag}_stamp.s", aslist=True, stamp=True, **opts)
    build(f"gen/{tag}.s", stamp=bool(opts.get("dbgst") or opts.get("mag") is not None), **opts)
```
